```python
import torch

def _softmax(x, axis=-1):
    return torch.softmax(x, dim=axis)

def _gelu(x):
    return torch.nn.functional.gelu(x, approximate='tanh')

def _silu(x):
    return torch.nn.functional.silu(x)

def _sigmoid(x):
    return torch.sigmoid(x)

def _layernorm(x, axis=-1, eps=1e-05):
    m = x.mean(dim=axis, keepdim=True)
    v = x.var(dim=axis, keepdim=True, unbiased=False)
    return (x - m) / torch.sqrt(v + eps)

def _scatter_add(tgt, idx, src, axis=0):
    return tgt.clone().index_add_(axis, idx, src)

def _segment_sum(src, seg, n):
    out = torch.zeros((n,) + src.shape[1:], dtype=src.dtype)
    return out.index_add_(0, seg, src)

def _pad(x, pw):
    flat = tuple((v for pair in reversed(pw) for v in pair))
    return torch.nn.functional.pad(x, flat)
kernel_name = 'adaLN_cond__sliding_local_dilated__glu_gated_reglu__prompt'

def setup_inputs():

    _w = lambda a: (lambda t: t.to(torch.bfloat16) if t.is_floating_point() else t)(torch.as_tensor(a))

    def _A_setup():
        B, S, D = (1, 2048, 512)
        return {'x': _w((lambda *s: torch.randn(*s, dtype=torch.bfloat16) * 0.05)(B, S, D)), 'wqkv': _w((lambda *s: torch.randn(*s, dtype=torch.bfloat16) * 0.05)(D, 3 * D)), 'wo': _w((lambda *s: torch.randn(*s, dtype=torch.bfloat16) * 0.05)(D, D))}
    _A_in = _A_setup()

    def _B_setup():
        B, S, D, F = (1, 2048, 512, 1792)
        return {'x': _w((lambda *s: torch.randn(*s, dtype=torch.bfloat16) * 0.05)(B, S, D)), 'W_gate': _w((lambda *s: torch.randn(*s, dtype=torch.bfloat16) * 0.8)(D, F) * (2.0 / D) ** 0.5), 'W_up': _w((lambda *s: torch.randn(*s, dtype=torch.bfloat16) * 0.8)(D, F) * (2.0 / D) ** 0.5), 'W_down': _w((lambda *s: torch.randn(*s, dtype=torch.bfloat16) * 0.8)(F, D) * (1.0 / F) ** 0.5)}
    _B_in = _B_setup()
    return {'A_x': _A_in['x'], 'A_wqkv': _A_in['wqkv'], 'A_wo': _A_in['wo'], 'B_x': _B_in['x'], 'B_W_gate': _B_in['W_gate'], 'B_W_up': _B_in['W_up'], 'B_W_down': _B_in['W_down'], 'c': _w((lambda *s: torch.randn(*s, dtype=torch.bfloat16) * 0.1)(1, 512) * 8.0), 'w_mod': _w((lambda *s: torch.randn(*s, dtype=torch.bfloat16) * 0.1)(512, 6 * 512) * 512 ** (-0.5) * 8.0)}

def reference(A_x, A_wqkv, A_wo, B_x, B_W_gate, B_W_up, B_W_down, c, w_mod):

    def _A_ref(x, wqkv, wo):
        B, S, D = x.shape
        H = 32
        Dh = D // H
        W, dil = (8, 2)
        qkv = (lambda x, *d: x.permute(*d))((x @ wqkv).reshape(B, S, 3, H, Dh), 2, 0, 3, 1, 4)
        q, k, v = (qkv[0], qkv[1], qkv[2])
        scale = Dh ** (-0.5)
        pos = torch.arange(S)
        off = torch.arange(W) * dil
        idx = pos[:, None] - off[None, :]
        mask = idx >= 0
        idx_c = torch.where(mask, idx, 0).reshape(-1)
        kg = k[:, :, idx_c, :].reshape(B, H, S, W, Dh)
        vg = v[:, :, idx_c, :].reshape(B, H, S, W, Dh)
        logits = torch.einsum('bhsd,bhswd->bhsw', q, kg) * scale
        logits = torch.where(mask[None, None, :, :], logits, -1000000000.0)
        attn = _softmax(logits, axis=-1)
        o = torch.einsum('bhsw,bhswd->bhsd', attn, vg)
        return (lambda x, *d: x.permute(*d))(o, 0, 2, 1, 3).reshape(B, S, D) @ wo

    def _B_ref(x, W_gate, W_up, W_down):
        gate = torch.einsum('bsd,df->bsf', x, W_gate)
        up = torch.einsum('bsd,df->bsf', x, W_up)
        gate = gate * (lambda x, dt: x.to(dt))(gate > 0, gate.dtype)
        h = gate * up
        return torch.einsum('bsf,fd->bsd', h, W_down)
    x = A_x
    mod = (_silu(c) @ w_mod).reshape(c.shape[0], 6, 1, -1)
    sa, ca, ga, sb, cb, gb = (mod[:, 0].clone(), mod[:, 1].clone(), mod[:, 2].clone(), mod[:, 3].clone(), mod[:, 4].clone(), mod[:, 5].clone())
    h = _layernorm(x, axis=-1) * (1 + ca) + sa
    x = x + ga * _A_ref(h, A_wqkv, A_wo)
    h = _layernorm(x, axis=-1) * (1 + cb) + sb
    x = x + gb * _B_ref(h, B_W_gate, B_W_up, B_W_down)
    return x
```

```python
import re

REG_RE = re.compile(r'\b([vas])(\d+)\b|\b([vas])\[(\d+):(\d+)\]|\b(vcc|exec|m0|scc)\b')

def regs_of(tok):
    out = set()
    for m in REG_RE.finditer(tok):
        if m.group(1):
            out.add((m.group(1), int(m.group(2))))
        elif m.group(3):
            for i in range(int(m.group(4)), int(m.group(5)) + 1):
                out.add((m.group(3), i))
        elif m.group(6):
            out.add((m.group(6), 0))
    return out

TRANS = ('v_exp_f32', 'v_log_f32', 'v_rcp_f32', 'v_rsq_f32', 'v_sqrt_f32', 'v_sin_f32', 'v_cos_f32', 'v_rcp_iflag_f32')

class Ins:
    def __init__(self, text):
        self.text = text
        t = text.split(';')[0].strip()
        self.is_label = t.endswith(':')
        self.is_dir = t.startswith('.')
        self.op = ''
        self.dst = set(); self.src = set()
        self.kind = 'other'
        self.ws = 1
        if self.is_label or self.is_dir or not t:
            self.ws = 0
            return
        parts = t.split(None, 1)
        self.op = op = parts[0]
        rest = parts[1] if len(parts) > 1 else ''
        ops = [o.strip() for o in rest.split(',')]
        self.ops = ops
        self.dpp = ('row_' in rest) or ('quad_perm' in rest) or ('wave_' in rest)
        if op == 's_nop':
            self.ws = int(ops[0], 0) + 1
            self.kind = 'nop'
        elif op.startswith('v_mfma'):
            self.kind = 'mfma'
            self.dst = regs_of(ops[0])
            self.srcA = regs_of(ops[1]); self.srcB = regs_of(ops[2]); self.srcC = regs_of(ops[3])
            self.src = self.srcA | self.srcB | self.srcC
            self.passes = 8 if '32x32' in op else 4
        elif op.startswith('v_cmp'):
            self.kind = 'valu'
            self.dst = regs_of(ops[0])
            for o in ops[1:]: self.src |= regs_of(o)
        elif op.startswith('v_'):
            self.kind = 'valu'
            self.dst = regs_of(ops[0])
            k = 1
            if op.startswith(('v_add_co', 'v_sub_co', 'v_addc_co', 'v_subb_co', 'v_subrev_co')):
                self.dst |= regs_of(ops[1]); k = 2
            for o in ops[k:]: self.src |= regs_of(o)
            if op.startswith(('v_fmac', 'v_dot2c', 'v_pk_fmac')) or 'dst_unused:UNUSED_PRESERVE' in rest:
                self.src |= self.dst
            if op.startswith('v_permlane') and 'swap' in op:
                self.dst |= regs_of(ops[1]); self.src |= regs_of(ops[0])
            if op.startswith('v_cndmask') and len(ops) == 3:
                self.src.add(('vcc', 0))
            if self.dpp:
                self.src |= self.dst
        elif op.startswith(('buffer_', 'global_', 'ds_', 'flat_')):
            self.kind = 'mem'
            st = ('store' in op) or op.startswith(('ds_write', 'global_atomic', 'buffer_atomic'))
            self.lds_dma = (' lds' in rest) or ('load_lds' in op)
            self.is_store = st
            if st or self.lds_dma:
                for o in ops: self.src |= regs_of(o)
                if 'atomic' in op and 'sc0' in rest:
                    self.dst = regs_of(ops[0])
            else:
                self.dst = regs_of(ops[0])
                for o in ops[1:]: self.src |= regs_of(o)
            self.wide_store = st and ('x4' in op or 'x3' in op) and not op.startswith('ds_')
            if self.wide_store:
                self.sdata = regs_of(ops[0]) if op.startswith('buffer_') else regs_of(ops[1])
        elif op.startswith('s_'):
            self.kind = 'salu'
            if op.startswith(('s_cmp', 's_cbranch', 's_branch', 's_waitcnt', 's_barrier', 's_endpgm', 's_setprio', 's_sleep')):
                for o in ops: self.src |= regs_of(o)
            else:
                self.dst = regs_of(ops[0])
                for o in ops[1:]: self.src |= regs_of(o)
                if 'saveexec' in op: self.dst.add(('exec', 0))

def vgprs(s):
    return {r for r in s if r[0] in 'va'}
def sgprs(s):
    return {r for r in s if r[0] in ('s', 'vcc')}

def need(p, c):
    n = 0
    if p.kind == 'valu':
        pd = vgprs(p.dst)
        if c.kind == 'mfma' and pd & c.src: n = max(n, 2)
        if c.kind == 'valu':
            if c.op.startswith(('v_readfirstlane', 'v_readlane')) and pd & c.src: n = max(n, 1)
            if c.dpp and pd & c.src: n = max(n, 2)
            if c.op.startswith('v_permlane') and pd & (c.src | c.dst): n = max(n, 2)
            if p.op.replace('_e32','').replace('_e64','') in TRANS and pd & (c.src): n = max(n, 1)
            if ('sdwa' in p.op) and pd & (c.src | c.dst): n = max(n, 1)
        ps = sgprs(p.dst)
        if ps:
            if c.kind == 'mem' and ps & c.src: n = max(n, 5)
            if c.kind == 'valu' and ps & c.src:
                n = max(n, 4 if c.op.startswith(('v_readlane', 'v_writelane')) else 2)
            if c.kind == 'salu' and ps & c.src: n = max(n, 1)
        if ('exec', 0) in p.dst: n = max(n, 5)
    if p.kind == 'mfma':
        big = p.passes == 8
        if c.kind == 'mfma':
            if p.dst & (c.srcA | c.srcB): n = max(n, 12 if big else 8)
            if p.dst & c.srcC:
                if not (p.dst == c.srcC and p.passes == c.passes): n = max(n, 10 if big else 6)
            elif p.dst & c.dst: n = max(n, 12 if big else 8)
        elif c.kind == 'valu':
            if p.dst & (c.src | c.dst): n = max(n, 12 if big else 8)
            if p.srcC & c.dst: n = max(n, 7 if big else 3)
        elif c.kind == 'mem':
            if p.dst & (c.src | c.dst): n = max(n, 12 if big else 8)
            if p.srcC & c.dst: n = max(n, 7 if big else 3)
    if p.kind == 'salu':
        if ('m0', 0) in p.dst and c.kind == 'mem' and getattr(c, 'lds_dma', False): n = max(n, 1)
    if p.kind == 'mem' and getattr(p, 'wide_store', False):
        if c.kind in ('valu', 'mfma') and p.sdata & c.dst: n = max(n, 2)
        if c.kind == 'mem' and p.sdata & c.dst: n = max(n, 1)
    return n

class Asm:
    def __init__(self):
        self.ins = []
    def __call__(self, text):
        for line in text.split('\n'):
            line = line.strip()
            if not line or line.startswith(';'): continue
            self.ins.append(Ins(line))
    def label(self, l):
        self.ins.append(Ins(l + ':'))
    def comment(self, c):
        i = Ins(''); i.text = '; ' + c; self.ins.append(i)
    def pad(self):
        out = []
        W = 20
        for c in self.ins:
            if c.ws and c.kind != 'nop':
                dist = 0; req = 0
                for p in reversed(out):
                    if dist >= W: break
                    if p.ws == 0: continue
                    r = need(p, c) - dist
                    if r > req: req = r
                    dist += p.ws
                while req > 0:
                    k = min(req, 16)
                    out.append(Ins(f's_nop {k-1}'))
                    req -= k
            out.append(c)
        self.ins = out
        labels = {i.text[:-1]: n for n, i in enumerate(out) if i.is_label}
        for n, b in enumerate(out):
            if b.op.startswith(('s_cbranch', 's_branch')):
                tgt = labels.get(b.ops[0])
                if tgt is None: continue
                cd = 0
                for c in out[tgt:tgt + 40]:
                    if c.ws == 0: continue
                    if cd >= W: break
                    dist = cd + 1
                    for p in reversed(out[:n]):
                        if dist >= W: break
                        if p.ws == 0: continue
                        if need(p, c) > dist:
                            raise Exception(f"hazard across branch {b.text}: {p.text} -> {c.text} dist {dist}")
                        dist += p.ws
                    cd += c.ws
    def text(self):
        return '\n'.join(('' if (i.is_label or i.is_dir) else '    ') + i.text for i in self.ins)

def kdesc(name, vgpr, sgpr=102, accum=None):
    if accum is None: accum = min(256, (vgpr + 3) // 4 * 4)
    return f"""
.p2align 6
.amdhsa_kernel {name}
  .amdhsa_next_free_vgpr {vgpr}
  .amdhsa_next_free_sgpr {sgpr}
  .amdhsa_accum_offset {accum}
  .amdhsa_group_segment_fixed_size 0
  .amdhsa_kernarg_size 96
  .amdhsa_user_sgpr_count 2
  .amdhsa_user_sgpr_kernarg_segment_ptr 1
  .amdhsa_system_sgpr_workgroup_id_x 1
.end_amdhsa_kernel
"""
def khead(name):
    return f".globl {name}\n.p2align 8\n.type {name},@function\n{name}:"
```

```python
from asmlib import *
NAME = "adaLN_cond__sliding_local_dilated__glu_gated_reglu__prompt"
KA_X, KA_WQKV, KA_WO, KA_WG, KA_WU, KA_WD, KA_C, KA_WMOD, KA_OUT, KA_DBG, KA_WS = 0, 8, 16, 32, 40, 48, 56, 64, 72, 80, 88
WS_MOD = 0;            SZ_MOD = 12288
WS_UT = 16384;         SZ_UT = 112 * 256
WS_ST = 65536;         SZ_ST = 64 * 4096
WS_O = 1 << 20;        SZ_O = 2 << 20
WS_X1 = 3 << 20;       SZ_X1 = 2 << 20
WS_WP = 5 << 20;       SZ_WP = 112 * 32768
WS_HH = 9 << 20;       SZ_HH = 64 * 112 * 1024
LOG2E = 1.4426950408889634
import struct
def f2u(f): return struct.unpack('<I', struct.pack('<f', f))[0]
NEG = 0xf149f2ca

def srd(a, d, base_lo, base_hi, off, size):
    if off == 0:
        a(f"s_mov_b32 s{d}, s{base_lo}")
        a(f"s_mov_b32 s{d+1}, s{base_hi}")
    else:
        a(f"s_add_u32 s{d}, s{base_lo}, {off}")
        a(f"s_addc_u32 s{d+1}, s{base_hi}, 0")
    a(f"s_mov_b32 s{d+2}, {size}")
    a(f"s_mov_b32 s{d+3}, 0x20000")

def bf16r(a, v, tmp=None):
    a(f"v_cvt_pk_bf16_f32 v{v}, v{v}, v{v}")
    a(f"v_lshlrev_b32 v{v}, 16, v{v}")

def k_mod():
    a = Asm(); n = "k0_mod_kernel"
    a(khead(n))
    a("s_cmp_ge_u32 s2, 96")
    a("s_cbranch_scc1 L_k0_end")
    a(f"s_load_dwordx4 s[4:7], s[0:1], {KA_C}")
    a(f"s_load_dwordx2 s[8:9], s[0:1], {KA_WS}")
    a("v_lshrrev_b32 v1, 2, v0")
    a("v_and_b32 v2, 3, v0")
    a("v_mul_u32_u24 v3, 6144, v1")
    a("v_lshl_add_u32 v3, v2, 4, v3")
    a("v_lshlrev_b32 v4, 1, v1")
    a("s_lshl_b32 s3, s2, 6")
    a("s_waitcnt lgkmcnt(0)")
    srd(a, 12, 4, 5, 0, 1024)
    srd(a, 16, 6, 7, 0, 512 * 6144)
    srd(a, 20, 8, 9, WS_MOD, SZ_MOD)
    for i in range(8):
        a(f"buffer_load_ushort v{8+i}, v4, s[12:15], 0 offen offset:{i*128}")
    for i in range(8):
        a(f"s_add_u32 s24, s3, {i*64*6144}")
        a(f"buffer_load_dwordx4 v[{16+4*i}:{19+4*i}], v3, s[16:19], s24 offen")
    a(f"s_mov_b32 s25, {f2u(-LOG2E)}")
    a("s_waitcnt vmcnt(8)")
    for i in range(8):
        a(f"v_lshlrev_b32 v{8+i}, 16, v{8+i}")
    for i in range(8):
        a(f"v_mul_f32 v{48+i}, s25, v{8+i}")
    for i in range(8):
        a(f"v_exp_f32 v{48+i}, v{48+i}")
    for i in range(8):
        a(f"v_add_f32 v{48+i}, 1.0, v{48+i}")
    for i in range(8):
        a(f"v_rcp_f32 v{48+i}, v{48+i}")
    for i in range(8):
        a(f"v_mul_f32 v{8+i}, v{8+i}, v{48+i}")
    for i in range(8):
        bf16r(a, 8+i)
    for i in range(8):
        a(f"s_waitcnt vmcnt({7-i})")
        for d in range(4):
            src = 16 + 4*i + d
            a(f"v_lshlrev_b32 v64, 16, v{src}")
            a(f"v_and_b32 v65, 0xffff0000, v{src}")
            if i == 0:
                a(f"v_mul_f32 v{56+2*d}, v{8+i}, v64")
                a(f"v_mul_f32 v{57+2*d}, v{8+i}, v65")
            else:
                a(f"v_fmac_f32 v{56+2*d}, v{8+i}, v64")
                a(f"v_fmac_f32 v{57+2*d}, v{8+i}, v65")
    for sh in (4, 8):
        for d in range(8):
            a(f"v_add_f32_dpp v{56+d}, v{56+d}, v{56+d} row_ror:{sh} row_mask:0xf bank_mask:0xf")
    a("v_lshrrev_b32 v5, 4, v0")
    a("v_lshlrev_b32 v5, 7, v5")
    a("v_lshl_add_u32 v5, v2, 5, v5")
    a("v_and_b32 v6, 12, v0")
    a("v_cmp_eq_u32 vcc, 0, v6")
    a("s_and_saveexec_b64 s[26:27], vcc")
    a("ds_write_b128 v5, v[56:59]")
    a("ds_write_b128 v5, v[60:63] offset:16")
    a("s_mov_b64 exec, s[26:27]")
    a("s_waitcnt lgkmcnt(0)")
    a("s_barrier")
    a("v_cmp_gt_u32 vcc, 32, v0")
    a("s_and_saveexec_b64 s[26:27], vcc")
    a("s_cbranch_execz L_k0_end")
    a("v_lshlrev_b32 v5, 2, v0")
    for p in range(16):
        a(f"ds_read_b32 v{16+p}, v5 offset:{p*128}")
    a("s_waitcnt lgkmcnt(0)")
    for st in (8, 4, 2, 1):
        for p in range(st):
            a(f"v_add_f32 v{16+p}, v{16+p}, v{16+p+st}")
    bf16r(a, 16)
    a("v_add_f32 v17, 1.0, v16")
    bf16r(a, 17)
    a("s_lshr_b32 s28, s2, 4")
    a("s_cmp_eq_u32 s28, 1")
    a("s_cselect_b32 s29, 1, 0")
    a("s_cmp_eq_u32 s28, 4")
    a("s_cselect_b32 s29, 1, s29")
    a("s_cmp_eq_u32 s29, 1")
    a("s_cbranch_scc0 L_k0_st")
    a("v_mov_b32 v16, v17")
    a.label("L_k0_st")
    a("s_lshl_b32 s3, s2, 7")
    a("buffer_store_dword v16, v5, s[20:23], s3 offen")
    a.label("L_k0_end")
    a("s_endpgm")
    a.pad()
    return n, a.text(), kdesc(n, 72, 40), f"; @launch kernel={n} grid=(96,1,1) block=(256,1,1) lds=2048"

def k_qkv():
    a = Asm(); n = "k1_qkv_kernel"
    LA, LB, LM = 0, 81920, 155648
    a(khead(n))
    a("s_cmp_ge_u32 s2, 256")
    a("s_cbranch_scc1 L_k1_end")
    a(f"s_load_dwordx4 s[4:7], s[0:1], {KA_X}")
    a(f"s_load_dwordx2 s[8:9], s[0:1], {KA_WS}")
    a("v_lshrrev_b32 v1, 6, v0")
    a("v_and_b32 v2, 63, v0")
    a("v_readfirstlane_b32 s20, v1")
    a("s_and_b32 s21, s2, 7")
    a("s_lshr_b32 s22, s2, 3")
    a("s_lshr_b32 s23, s21, 1")
    a("s_lshl_b32 s23, s23, 3")
    a("s_and_b32 s24, s22, 7")
    a("s_add_u32 s23, s23, s24")
    a("s_and_b32 s24, s21, 1")
    a("s_lshl_b32 s24, s24, 2")
    a("s_lshr_b32 s25, s22, 3")
    a("s_add_u32 s24, s24, s25")
    a("v_lshrrev_b32 v3, 4, v2")
    a("v_lshl_add_u32 v3, v1, 2, v3")
    a("v_and_b32 v4, 15, v2")
    a("s_lshl_b32 s25, s23, 16")
    a("v_lshlrev_b32 v5, 10, v3")
    a("v_lshl_add_u32 v5, v4, 4, v5")
    a("v_add_u32 v5, s25, v5")
    a("v_subrev_u32 v5, 16384, v5")
    a("v_lshlrev_b32 v6, 11, v3")
    a("v_lshl_add_u32 v6, v4, 4, v6")
    a("v_add_u32 v6, s25, v6")
    a("v_add_u32 v7, 32768, v6")
    a("v_lshrrev_b32 v9, 3, v2")
    a("v_and_b32 v10, 7, v2")
    a("v_bfe_u32 v11, v9, 1, 1")
    a("v_lshlrev_b32 v11, 1, v11")
    a("v_xor_b32 v10, v10, v11")
    a("v_and_b32 v11, 1, v1")
    a("v_lshlrev_b32 v11, 2, v11")
    a("v_xor_b32 v10, v10, v11")
    a("v_mul_u32_u24 v8, 3072, v9")
    a("v_lshl_add_u32 v8, v10, 4, v8")
    a("s_lshl_b32 s26, s24, 7")
    a("s_mul_i32 s27, s20, 24576")
    a("s_mul_i32 s28, s20, 3072")
    a(f"s_add_u32 s28, s28, {LB}")
    a("v_lshlrev_b32 v12, 4, v2")
    a("s_lshl_b32 s29, s20, 10")
    a("s_waitcnt lgkmcnt(0)")
    srd(a, 12, 4, 5, 0, 2048 * 1024)
    a("s_add_u32 s16, s6, s26")
    a("s_addc_u32 s17, s7, 0")
    a(f"s_sub_u32 s18, {512*3072}, s26")
    a("s_mov_b32 s19, 0x20000")
    srd(a, 32, 8, 9, WS_MOD, SZ_MOD)
    srd(a, 36, 8, 9, WS_O, SZ_O)
    XR = 16
    addr = [("v5", 0), ("v6", 0), ("v6", 1024), ("v7", 0), ("v7", 1024)]
    for j in range(5):
        for i in range(4):
            r = XR + j*16 + i*4
            a(f"buffer_load_dwordx4 v[{r}:{r+3}], {addr[j][0]}, s[12:15], 0 offen offset:{addr[j][1] + i*256}")
    a("buffer_load_dwordx4 v[96:99], v12, s[32:35], s29 offen")
    def dma_chunk(c):
        st = c % 3
        for i in range(2):
            a(f"s_add_u32 m0, s28, {st*24576 + i*4*3072}")
            a(f"s_add_u32 s30, s27, {(c*64 + i*32)*3072}")
            for p in range(3):
                a(f"buffer_load_dwordx4 v8, s[16:19], s30 offen offset:{p*1024} lds")
    for c in range(3): dma_chunk(c)
    BI = 200
    a("v_and_b32 v9, 15, v2")
    a("v_lshrrev_b32 v10, 4, v2")
    a(f"v_mov_b32 v11, {NEG:#x}")
    a("v_lshlrev_b32 v13, 2, v10")
    a("v_sub_u32 v14, v9, v13")
    a("v_lshlrev_b32 v15, 1, v9")
    a("v_sub_u32 v15, v13, v15")
    for r in range(4):
        a(f"v_subrev_u32 v100, {r}, v14")
        a("v_cmp_ge_u32 vcc, 7, v100")
        a(f"v_cndmask_b32 v{BI+r}, v11, 0, vcc" if False else f"v_cndmask_b32_e64 v{BI+r}, v11, 0, vcc")
        a(f"v_cmp_ge_i32 vcc, -9, v100")
        a(f"v_cndmask_b32_e64 v{BI+4+r}, v11, 0, vcc")
        a(f"v_add_u32 v100, {r}, v15")
        if r % 2 == 0:
            a("v_cmp_le_i32 vcc, 2, v100")
            a(f"v_cndmask_b32_e64 v{BI+8+r}, v11, 0, vcc")
            a(f"v_mov_b32 v{BI+12+r}, v11")
        else:
            a("v_cmp_le_i32 vcc, 3, v100")
            a(f"v_cndmask_b32_e64 v{BI+12+r}, v11, 0, vcc")
            a(f"v_mov_b32 v{BI+8+r}, v11")
    a("s_cmp_lg_u32 s23, 0")
    a("s_cbranch_scc1 L_k1_nb")
    for r in range(8):
        a(f"v_mov_b32 v{BI+8+r}, v11")
    a.label("L_k1_nb")
    a("s_sub_u32 s31, 0, s20")
    a("s_and_b32 s31, s31, 3")
    a("v_and_b32 v100, 3, v4")
    a("v_xor_b32 v100, s31, v100")
    a("v_lshrrev_b32 v101, 2, v4")
    a("v_lshlrev_b32 v101, 10, v101")
    a("v_lshl_add_u32 v101, v3, 6, v101")
    a("v_lshl_add_u32 v216, v100, 4, v101")
    a("v_add_u32 v217, 65536, v216")
    a("v_lshrrev_b32 v100, 2, v9")
    a("v_sub_u32 v100, 0, v100")
    a("v_and_b32 v100, 3, v100")
    a("v_xor_b32 v100, v10, v100")
    a("v_lshlrev_b32 v101, 6, v9")
    a("v_lshl_add_u32 v218, v100, 4, v101")
    a("v_add_u32 v219, 65536, v218")
    a("v_bfe_u32 v100, v2, 2, 2")
    a("v_lshrrev_b32 v101, 1, v100")
    a("v_and_b32 v102, 1, v10")
    a("v_lshl_or_b32 v101, v102, 1, v101")
    a("v_xor_b32 v101, s20, v101")
    a("v_mul_u32_u24 v220, 3072, v10")
    a("v_lshl_add_u32 v220, v100, 7, v220")
    a("v_lshl_add_u32 v220, v101, 5, v220")
    a("v_and_b32 v102, 3, v2")
    a("v_lshl_add_u32 v220, v102, 3, v220")
    a(f"v_add_u32 v220, {LB}, v220")
    a("v_and_b32 v100, 1, v10")
    a("v_lshlrev_b32 v100, 9, v100")
    a("v_lshl_add_u32 v100, v9, 5, v100")
    a("v_lshrrev_b32 v101, 1, v10")
    a("v_lshl_add_u32 v221, v101, 3, v100")
    a(f"v_add_u32 v100, s29, v12")
    a("s_waitcnt vmcnt(18)")
    a(f"ds_write_b128 v100, v[96:99] offset:0" if LM < 65536 else f"v_add_u32 v100, {LM}, v100\nds_write_b128 v100, v[96:99]")
    a("s_waitcnt lgkmcnt(0)")
    a("s_barrier")
    a("v_lshlrev_b32 v100, 5, v4")
    a(f"v_add_u32 v160, {LM}, v100")
    for i in range(4):
        for h in range(2):
            a(f"ds_read_b128 v[{96+i*8+h*4}:{99+i*8+h*4}], v160 offset:{i*512+h*16}")
            a(f"ds_read_b128 v[{128+i*8+h*4}:{131+i*8+h*4}], v160 offset:{2048+i*512+h*16}")
    T = 164
    for j in range(5):
        xr = XR + j*16
        for d in range(16):
            a(f"v_lshlrev_b32 v{T+2*d}, 16, v{xr+d}")
            a(f"v_and_b32 v{T+2*d+1}, 0xffff0000, v{xr+d}")
        a(f"v_pk_add_f32 v[196:197], v[{T}:{T+1}], v[{T+2}:{T+3}]")
        a(f"v_pk_add_f32 v[198:199], v[{T+4}:{T+5}], v[{T+6}:{T+7}]")
        for d in range(4, 16, 2):
            a(f"v_pk_add_f32 v[196:197], v[196:197], v[{T+2*d}:{T+2*d+1}]")
            a(f"v_pk_add_f32 v[198:199], v[198:199], v[{T+2*d+2}:{T+2*d+3}]")
        a("v_pk_add_f32 v[196:197], v[196:197], v[198:199]")
        a("v_add_f32 v196, v196, v197")
        for sh in (8, 4, 2, 1):
            a(f"v_add_f32_dpp v196, v196, v196 row_ror:{sh} row_mask:0xf bank_mask:0xf")
        a(f"v_mul_f32 v196, {f2u(1/512):#x}, v196")
        for d in range(16):
            a(f"v_pk_add_f32 v[{T+2*d}:{T+2*d+1}], v[{T+2*d}:{T+2*d+1}], v[196:197] op_sel_hi:[1,0] neg_lo:[0,1] neg_hi:[0,1]")
        a(f"v_pk_mul_f32 v[198:199], v[{T}:{T+1}], v[{T}:{T+1}]")
        a(f"v_pk_mul_f32 v[162:163], v[{T+2}:{T+3}], v[{T+2}:{T+3}]")
        for d in range(2, 16, 2):
            a(f"v_pk_fma_f32 v[198:199], v[{T+2*d}:{T+2*d+1}], v[{T+2*d}:{T+2*d+1}], v[198:199]")
            a(f"v_pk_fma_f32 v[162:163], v[{T+2*d+2}:{T+2*d+3}], v[{T+2*d+2}:{T+2*d+3}], v[162:163]")
        a("v_pk_add_f32 v[198:199], v[198:199], v[162:163]")
        a("v_add_f32 v198, v198, v199")
        for sh in (8, 4, 2, 1):
            a(f"v_add_f32_dpp v198, v198, v198 row_ror:{sh} row_mask:0xf bank_mask:0xf")
        a(f"v_mul_f32 v198, {f2u(1/512):#x}, v198")
        bf16r(a, 198)
        a(f"v_add_f32 v198, {f2u(1e-5):#x}, v198")
        bf16r(a, 198)
        a("v_sqrt_f32 v198, v198")
        bf16r(a, 198)
        a("v_rcp_f32 v198, v198")
        a("v_cvt_pk_bf16_f32 v197, v196, v196")
        a("v_lshlrev_b32 v197, 16, v197")
        a("v_sub_f32 v196, v196, v197")
        a("v_mul_f32 v196, v196, v198")
        if j == 0:
            a("s_waitcnt lgkmcnt(0)")
        for d in range(16):
            a(f"v_pk_fma_f32 v[{T+2*d}:{T+2*d+1}], v[{T+2*d}:{T+2*d+1}], v[198:199], v[196:197] op_sel_hi:[1,0,0]")
        for d in range(16):
            a(f"v_pk_fma_f32 v[{T+2*d}:{T+2*d+1}], v[{T+2*d}:{T+2*d+1}], v[{128+2*d}:{129+2*d}], v[{96+2*d}:{97+2*d}]")
        for d in range(16):
            a(f"v_cvt_pk_bf16_f32 v{xr+d}, v{T+2*d}, v{T+2*d+1}")
        for i in range(4):
            if j < 4:
                a(f"ds_write_b128 v216, v[{xr+4*i}:{xr+4*i+3}] offset:{j*16384 + i*4096}")
            else:
                a(f"ds_write_b128 v217, v[{xr+4*i}:{xr+4*i+3}] offset:{i*4096}")
    return a, n, dma_chunk, BI

def k_qkv_full():
    a, n, dma_chunk, BI = k_qkv()
    ACC = 16
    AF = [72, 92]; BF = [112, 124]
    def accQ(t): return ACC + (t-1)*4
    def accK(t): return ACC + (4+t)*4
    def accV(t): return ACC + (9+t)*4
    def reads(s):
        c, ks = s // 2, s % 2
        st = c % 3
        af, bf = AF[s % 2], BF[s % 2]
        for p in range(3):
            for e in range(2):
                a(f"ds_read_b64_tr_b16 v[{bf+p*4+e*2}:{bf+p*4+e*2+1}], v220 offset:{st*24576 + ks*12288 + p*1024 + e*512}")
        for t in range(5):
            if t < 4:
                a(f"ds_read_b128 v[{af+t*4}:{af+t*4+3}], v218 offset:{t*16384 + s*1024}")
            else:
                a(f"ds_read_b128 v[{af+t*4}:{af+t*4+3}], v219 offset:{s*1024}")
    def mfmas(s):
        af, bf = AF[s % 2], BF[s % 2]
        def C(r): return "0" if s == 0 else f"v[{r}:{r+3}]"
        for t in range(5):
            A = f"v[{af+t*4}:{af+t*4+3}]"
            if t > 0:
                r = accQ(t); a(f"v_mfma_f32_16x16x32_bf16 v[{r}:{r+3}], v[{bf}:{bf+3}], {A}, {C(r)}")
            r = accK(t); a(f"v_mfma_f32_16x16x32_bf16 v[{r}:{r+3}], v[{bf+4}:{bf+7}], {A}, {C(r)}")
            r = accV(t); a(f"v_mfma_f32_16x16x32_bf16 v[{r}:{r+3}], {A}, v[{bf+8}:{bf+11}], {C(r)}")
    a("s_waitcnt lgkmcnt(0) vmcnt(12)")
    a("s_barrier")
    reads(0)
    for s in range(16):
        if s + 1 < 16:
            if (s + 1) % 2 == 0:
                c = (s + 1) // 2
                a(f"s_waitcnt lgkmcnt(0) vmcnt({6 if c < 7 else 0})")
                a("s_barrier")
                reads(s + 1)
                if c + 2 < 8: dma_chunk(c + 2)
            else:
                reads(s + 1)
                a("s_waitcnt lgkmcnt(11)")
        else:
            a("s_waitcnt lgkmcnt(0)")
        mfmas(s)
    PQ = 72; PK = 80; PV = 90
    for t in range(1, 5):
        r = accQ(t)
        a(f"v_cvt_pk_bf16_f32 v{PQ+(t-1)*2}, v{r}, v{r+1}")
        a(f"v_cvt_pk_bf16_f32 v{PQ+(t-1)*2+1}, v{r+2}, v{r+3}")
    for t in range(5):
        r = accK(t)
        a(f"v_cvt_pk_bf16_f32 v{PK+t*2}, v{r}, v{r+1}")
        a(f"v_cvt_pk_bf16_f32 v{PK+t*2+1}, v{r+2}, v{r+3}")
    VO = 100
    prev = {1: 0, 2: 0, 3: 1, 4: 2}
    for t in range(1, 5):
        for h, tt in enumerate((prev[t], t)):
            r = accV(tt)
            a(f"v_cvt_pk_bf16_f32 v{VO+(t-1)*4+h*2}, v{r}, v{r+1}")
            a(f"v_cvt_pk_bf16_f32 v{VO+(t-1)*4+h*2+1}, v{r+2}, v{r+3}")
    SR = 116
    pb = {1: BI+8, 2: BI+12, 3: BI+4, 4: BI+4}
    for t in range(1, 5):
        s0 = SR + (t-1)*8
        q = PQ + (t-1)*2
        kp = PK + prev[t]*2; ks = PK + t*2
        a(f"v_mfma_f32_16x16x16_bf16 v[{s0}:{s0+3}], v[{kp}:{kp+1}], v[{q}:{q+1}], v[{pb[t]}:{pb[t]+3}]")
        a(f"v_mfma_f32_16x16x16_bf16 v[{s0+4}:{s0+7}], v[{ks}:{ks+1}], v[{q}:{q+1}], v[{BI}:{BI+3}]")
    a(f"s_mov_b32 s40, {f2u(0.25*LOG2E):#x}")
    M = 148
    for t in range(1, 5):
        s0 = SR + (t-1)*8; m = M + (t-1)*4
        a(f"v_max3_f32 v{m}, v{s0}, v{s0+1}, v{s0+2}")
        a(f"v_max3_f32 v{m+1}, v{s0+3}, v{s0+4}, v{s0+5}")
        a(f"v_max3_f32 v{m}, v{m}, v{s0+6}, v{s0+7}")
        a(f"v_max_f32 v{m}, v{m}, v{m+1}")
    for sw in ("16", "32"):
        for t in range(1, 5):
            m = M + (t-1)*4
            a(f"v_mov_b32 v{m+1}, v{m}")
        for t in range(1, 5):
            m = M + (t-1)*4
            a(f"v_permlane{sw}_swap_b32 v{m}, v{m+1}")
        for t in range(1, 5):
            m = M + (t-1)*4
            a(f"v_max_f32 v{m}, v{m}, v{m+1}")
    for t in range(1, 5):
        s0 = SR + (t-1)*8; m = M + (t-1)*4
        a(f"v_mul_f32 v{m}, s40, v{m}")
        for r in range(8):
            a(f"v_fma_f32 v{s0+r}, v{s0+r}, s40, -v{m}")
    for t in range(1, 5):
        s0 = SR + (t-1)*8
        for r in range(8):
            a(f"v_exp_f32 v{s0+r}, v{s0+r}")
    for t in range(1, 5):
        s0 = SR + (t-1)*8; m = M + (t-1)*4
        a(f"v_add_f32 v{m}, v{s0}, v{s0+1}")
        a(f"v_add_f32 v{m+1}, v{s0+2}, v{s0+3}")
        a(f"v_add_f32 v{m+2}, v{s0+4}, v{s0+5}")
        a(f"v_add_f32 v{m+3}, v{s0+6}, v{s0+7}")
        a(f"v_add_f32 v{m}, v{m}, v{m+1}")
        a(f"v_add_f32 v{m+2}, v{m+2}, v{m+3}")
        a(f"v_add_f32 v{m}, v{m}, v{m+2}")
    for sw in ("16", "32"):
        for t in range(1, 5):
            m = M + (t-1)*4
            a(f"v_mov_b32 v{m+1}, v{m}")
        for t in range(1, 5):
            m = M + (t-1)*4
            a(f"v_permlane{sw}_swap_b32 v{m}, v{m+1}")
        for t in range(1, 5):
            m = M + (t-1)*4
            a(f"v_add_f32 v{m}, v{m}, v{m+1}")
    for t in range(1, 5):
        m = M + (t-1)*4
        a(f"v_rcp_f32 v{m}, v{m}")
    PP = 164
    for t in range(1, 5):
        s0 = SR + (t-1)*8; m = M + (t-1)*4
        for r in range(8):
            a(f"v_mul_f32 v{s0+r}, v{s0+r}, v{m}")
        for r in range(4):
            a(f"v_cvt_pk_bf16_f32 v{PP+(t-1)*4+r}, v{s0+2*r}, v{s0+2*r+1}")
    OO = 180
    for t in range(1, 5):
        a(f"v_mfma_f32_16x16x32_bf16 v[{OO+(t-1)*4}:{OO+(t-1)*4+3}], v[{VO+(t-1)*4}:{VO+(t-1)*4+3}], v[{PP+(t-1)*4}:{PP+(t-1)*4+3}], 0")
    a("s_lshl_b32 s41, s24, 2")
    a("s_add_u32 s41, s41, s20")
    a("s_lshl_b32 s41, s41, 10")
    a("s_lshl_b32 s42, s23, 16")
    a("s_add_u32 s41, s41, s42")
    a("s_add_u32 s42, s41, 32768")
    for t in range(1, 5):
        o = OO + (t-1)*4
        a(f"v_cvt_pk_bf16_f32 v{o}, v{o}, v{o+1}")
        a(f"v_cvt_pk_bf16_f32 v{o+1}, v{o+2}, v{o+3}")
        half, par = (t-1)//2, (t-1) % 2
        a(f"buffer_store_dwordx2 v[{o}:{o+1}], v221, s[36:39], s{41+half} offen offset:{par*16}")
    a.label("L_k1_end")
    a("s_endpgm")
    a.pad()
    return n, a.text(), kdesc(n, 224, 48), f"; @launch kernel={n} grid=(256,1,1) block=(256,1,1) lds=159744"

def k_gemm64(which):
    a = Asm()
    wo = which == "wo"
    n = "k2_wo_kernel" if wo else "k4_down_kernel"
    L = "L_k2" if wo else "L_k4"
    KB = 32 if wo else 112
    NCH = KB // 8
    NST = 4 if wo else 5
    LX = 131072
    a(khead(n))
    a("s_cmp_ge_u32 s2, 256")
    a(f"s_cbranch_scc1 {L}_end")
    a(f"s_load_dwordx2 s[4:5], s[0:1], {KA_WO if wo else KA_WD}")
    a(f"s_load_dwordx2 s[6:7], s[0:1], {KA_X if wo else KA_OUT}")
    a(f"s_load_dwordx2 s[8:9], s[0:1], {KA_WS}")
    a("v_lshrrev_b32 v1, 6, v0")
    a("v_and_b32 v2, 63, v0")
    a("v_readfirstlane_b32 s20, v1")
    a("s_and_b32 s21, s2, 7")
    a("s_lshr_b32 s22, s2, 3")
    a("s_lshl_b32 s23, s21, 2")
    a("s_and_b32 s24, s22, 3")
    a("s_add_u32 s23, s23, s24")
    a("s_lshr_b32 s24, s22, 2")
    a("s_and_b32 s25, s20, 1")
    a("s_lshr_b32 s26, s20, 1")
    a("v_lshlrev_b32 v3, 4, v2")
    a("v_lshrrev_b32 v8, 3, v2")
    a("v_and_b32 v9, 7, v2")
    a("v_bfe_u32 v10, v8, 1, 1")
    a("v_lshlrev_b32 v10, 2, v10")
    a("v_xor_b32 v9, v9, v10")
    a("v_lshlrev_b32 v4, 10, v8")
    a("v_lshl_add_u32 v4, v9, 4, v4")
    for j in range(1, 4):
        a(f"v_add_u32 v{4+j}, {j*7168}, v4")
    a(f"s_mul_i32 s27, s25, {KB*1024}")
    a("s_lshl_b32 s29, s26, 12")
    a("s_add_u32 s27, s27, s29")
    a("s_lshl_b32 s28, s25, 13")
    a("s_add_u32 s28, s28, s29")
    a("s_lshl_b32 s30, s20, 15")
    a("s_lshl_b32 s31, s20, 12")
    a("s_add_u32 s31, s31, 16384")
    a(f"s_mul_i32 s40, s23, {2*KB*1024}")
    a("s_lshl_b32 s41, s24, 7")
    a("s_waitcnt lgkmcnt(0)")
    a(f"s_add_u32 s12, s8, {WS_O if wo else WS_HH}")
    a("s_addc_u32 s13, s9, 0")
    a("s_add_u32 s12, s12, s40")
    a("s_addc_u32 s13, s13, 0")
    a(f"s_mov_b32 s14, {2*KB*1024}")
    a("s_mov_b32 s15, 0x20000")
    a("s_add_u32 s16, s4, s41")
    a("s_addc_u32 s17, s5, 0")
    a(f"s_sub_u32 s18, {KB*16*1024}, s41")
    a("s_mov_b32 s19, 0x20000")
    srd(a, 32, 8, 9, WS_MOD, SZ_MOD)
    srd(a, 36, 8, 9, WS_X1, SZ_X1)
    srd(a, 44, 6, 7, 0, 2048*1024)
    if wo: srd(a, 48, 8, 9, WS_ST, SZ_ST)
    def dma_chunk(c):
        st = c % NST
        a(f"s_add_u32 m0, s28, {st*32768}")
        a(f"s_add_u32 s42, s27, {c*8192}")
        for j in range(4):
            a(f"buffer_load_dwordx4 v3, s[12:15], s42 offen offset:{j*1024} lds")
        a(f"s_add_u32 m0, s31, {st*32768}")
        a(f"s_add_u32 s42, s30, {c*128*1024}")
        for j in range(4):
            a(f"buffer_load_dwordx4 v{4+j}, s[16:19], s42 offen offset:{j*1024} lds")
    NPRE = min(NST, NCH) if wo else NST - 1
    for c in range(NPRE): dma_chunk(c)
    a("v_lshrrev_b32 v10, 5, v2")
    a("v_lshlrev_b32 v11, 4, v10")
    a("s_lshl_b32 s43, s24, 8")
    a("s_lshl_b32 s52, s26, 7")
    a("s_add_u32 s43, s43, s52")
    a(f"s_add_u32 s43, s43, {(2 if wo else 5)*2048}")
    nextra = 4
    for j in range(4):
        a(f"buffer_load_dwordx4 v[{40+4*j}:{43+4*j}], v11, s[32:35], s43 offen offset:{j*32}")
    a("s_lshl_b32 s53, s23, 1")
    a("s_add_u32 s53, s53, s25")
    a("s_lshl_b32 s54, s53, 5")
    a("s_lshl_b32 s55, s24, 2")
    a("s_add_u32 s54, s54, s55")
    a("s_lshl_b32 s55, s26, 1")
    a("s_add_u32 s54, s54, s55")
    a("s_lshl_b32 s54, s54, 10")
    a("s_lshl_b32 s56, s53, 15")
    a("s_add_u32 s56, s56, s41")
    a("s_lshl_b32 s55, s26, 6")
    a("s_add_u32 s56, s56, s55")
    if wo:
        a("v_lshrrev_b32 v12, 2, v2")
        a("v_lshlrev_b32 v12, 10, v12")
        a("v_and_b32 v13, 3, v2")
        a("v_lshl_add_u32 v12, v13, 4, v12")
        a("v_add_u32 v13, 15360, v12")
        a("s_lshl_b32 s55, s20, 11")
        a(f"s_add_u32 s55, s55, {LX}")
        a("s_mov_b32 m0, s55")
        a("buffer_load_dwordx4 v12, s[44:47], s56 offen lds")
        a("buffer_load_dwordx4 v13, s[44:47], s56 offen offset:1024 lds")
        nextra += 2
    else:
        a("buffer_load_dwordx4 v[56:59], v3, s[36:39], s54 offen")
        a("buffer_load_dwordx4 v[60:63], v3, s[36:39], s54 offen offset:1024")
        nextra += 2
    a("s_lshl_b32 s57, s25, 13")
    a("v_add_u32 v14, s57, v3")
    a("v_bfe_u32 v8, v2, 2, 2")
    a("v_lshl_add_u32 v9, v10, 2, v8")
    a("v_lshlrev_b32 v15, 7, v9")
    a("v_lshrrev_b32 v8, 1, v8")
    a("v_xor_b32 v8, s26, v8")
    a("v_lshl_add_u32 v15, v8, 6, v15")
    a("v_bfe_u32 v8, v2, 4, 1")
    a("v_lshl_add_u32 v15, v8, 5, v15")
    a("v_and_b32 v8, 3, v2")
    a("v_lshl_add_u32 v15, v8, 3, v15")
    a("v_add_u32 v15, 16384, v15")
    a("v_add_u32 v16, 65536, v14")
    a("v_add_u32 v17, 65536, v15")
    a("v_add_u32 v18, 131072, v14")
    a("v_add_u32 v19, 131072, v15")
    ACC = 64
    FR = [80, 96, 112, 128]
    FR = [80 + 8*i for i in range(4)]
    def reads(s):
        c, ks = s // 8, s % 8
        st = c % NST
        va, vb = (14, 15) if st < 2 else ((16, 17) if st < 4 else (18, 19))
        so = (st % 2) * 32768
        f = FR[s % 4]
        a(f"ds_read_b128 v[{f}:{f+3}], v{va} offset:{so + ks*1024}")
        a(f"ds_read_b64_tr_b16 v[{f+4}:{f+5}], v{vb} offset:{so + ks*2048}")
        a(f"ds_read_b64_tr_b16 v[{f+6}:{f+7}], v{vb} offset:{so + ks*2048 + 1024}")
    def mfma(s):
        f = FR[s % 4]
        C = "0" if s == 0 else f"v[{ACC}:{ACC+15}]"
        a(f"v_mfma_f32_32x32x16_bf16 v[{ACC}:{ACC+15}], v[{f+4}:{f+7}], v[{f}:{f+3}], {C}")
    order = []
    for c in range(NPRE): order += [("c", c)] * 8
    order += [("x", 0)] * nextra
    def wait_chunk(c):
        last = max(i for i, o in enumerate(order) if o == ("c", c))
        return len(order) - 1 - last
    PD = 2
    NS = KB
    issued = NPRE
    def chunk_gate(c):
        nonlocal issued
        a(f"s_waitcnt lgkmcnt(0) vmcnt({min(63, wait_chunk(c))})")
        a("s_barrier")
    chunk_gate(0)
    for s in range(PD): reads(s)
    for s in range(NS):
        t = s + PD
        pend_dma = None
        if t < NS:
            if t % 8 == 0:
                c = t // 8
                chunk_gate(c)
                if issued < NCH:
                    pend_dma = issued
                reads(t)
            else:
                reads(t)
                a(f"s_waitcnt lgkmcnt({3*PD})")
        else:
            a(f"s_waitcnt lgkmcnt({3*(NS-1-s)})")
        mfma(s)
        if pend_dma is not None:
            dma_chunk(pend_dma); order.extend([("c", pend_dma)] * 8); issued += 1
    a("s_waitcnt vmcnt(0)")
    if wo:
        a("v_and_b32 v8, 31, v2")
        a("v_lshlrev_b32 v8, 6, v8")
        a("v_lshl_add_u32 v8, v10, 3, v8")
        a("v_add_u32 v8, s55, v8")
        for j in range(4):
            a(f"ds_read_b64 v[{56+2*j}:{57+2*j}], v8 offset:{j*16}")
        a("s_waitcnt lgkmcnt(0)")
    for d in range(8):
        a(f"v_lshlrev_b32 v{80+2*d}, 16, v{56+d}")
        a(f"v_and_b32 v{81+2*d}, 0xffff0000, v{56+d}")
    for d in range(16):
        a(f"v_fma_f32 v{80+d}, v{ACC+d}, v{40+d}, v{80+d}")
    for d in range(8):
        a(f"v_cvt_pk_bf16_f32 v{56+d}, v{80+2*d}, v{81+2*d}")
    if wo:
        a("buffer_store_dwordx4 v[56:59], v3, s[36:39], s54 offen")
        a("buffer_store_dwordx4 v[60:63], v3, s[36:39], s54 offen offset:1024")
        for d in range(8):
            a(f"v_lshlrev_b32 v{80+2*d}, 16, v{56+d}")
            a(f"v_and_b32 v{81+2*d}, 0xffff0000, v{56+d}")
        a("v_pk_add_f32 v[96:97], v[80:81], v[82:83]")
        for d in range(2, 8):
            a(f"v_pk_add_f32 v[96:97], v[96:97], v[{80+2*d}:{81+2*d}]")
        a("v_add_f32 v96, v96, v97")
        a("v_mov_b32 v97, v96")
        a("v_permlane32_swap_b32 v96, v97")
        a("v_add_f32 v96, v96, v97")
        a(f"v_mul_f32 v96, {f2u(1/32):#x}, v96")
        for d in range(8):
            a(f"v_pk_add_f32 v[{80+2*d}:{81+2*d}], v[{80+2*d}:{81+2*d}], v[96:97] op_sel_hi:[1,0] neg_lo:[0,1] neg_hi:[0,1]")
        a("v_pk_mul_f32 v[98:99], v[80:81], v[80:81]")
        for d in range(1, 8):
            a(f"v_pk_fma_f32 v[98:99], v[{80+2*d}:{81+2*d}], v[{80+2*d}:{81+2*d}], v[98:99]")
        a("v_add_f32 v98, v98, v99")
        a("v_mov_b32 v99, v98")
        a("v_permlane32_swap_b32 v98, v99")
        a("v_add_f32 v97, v98, v99")
        a("s_lshl_b32 s57, s53, 12")
        a("s_and_b32 s58, s24, 3")
        a("s_lshl_b32 s58, s58, 10")
        a("s_add_u32 s57, s57, s58")
        a("s_lshr_b32 s58, s24, 2")
        a("s_lshl_b32 s58, s58, 9")
        a("s_add_u32 s57, s57, s58")
        a("s_lshl_b32 s58, s26, 3")
        a("s_add_u32 s57, s57, s58")
        a("v_cmp_gt_u32 vcc, 32, v2")
        a("s_and_saveexec_b64 s[60:61], vcc")
        a("buffer_store_dwordx2 v[96:97], v3, s[48:51], s57 offen")
    else:
        a("v_and_b32 v8, 31, v2")
        a("v_lshlrev_b32 v8, 10, v8")
        a("v_lshl_add_u32 v8, v10, 3, v8")
        for j in range(4):
            a(f"buffer_store_dwordx2 v[{56+2*j}:{57+2*j}], v8, s[44:47], s56 offen offset:{j*16}")
    a.label(f"{L}_end")
    a("s_endpgm")
    a.pad()
    lds = 139264 if wo else 163840
    return n, a.text(), kdesc(n, 128, 72), f"; @launch kernel={n} grid=(256,1,1) block=(256,1,1) lds={lds}"

def k_pw():
    a = Asm(); n = "kw_prep_kernel"
    a(khead(n))
    a("s_cmp_ge_u32 s2, 112")
    a("s_cbranch_scc1 L_kw_end")
    a(f"s_load_dwordx4 s[4:7], s[0:1], {KA_WG}")
    a(f"s_load_dwordx2 s[8:9], s[0:1], {KA_WS}")
    a("v_lshrrev_b32 v1, 6, v0")
    a("v_and_b32 v2, 63, v0")
    a("v_readfirstlane_b32 s20, v1")
    a("v_lshrrev_b32 v3, 1, v2")
    a("v_mul_u32_u24 v4, 3584, v3")
    a("v_and_b32 v3, 1, v2")
    a("v_lshl_add_u32 v4, v3, 4, v4")
    for j in range(1, 4):
        a(f"v_add_u32 v{4+j}, {j*(32*3584-1024)}, v4")
    a(f"s_mul_i32 s21, s20, {128*3584}")
    a("s_lshl_b32 s22, s2, 5")
    a("s_add_u32 s21, s21, s22")
    a(f"s_mul_i32 s22, s20, 8448")
    a("v_lshrrev_b32 v10, 5, v2")
    a("v_lshlrev_b32 v11, 4, v10")
    a("s_lshl_b32 s23, s20, 9")
    a("s_waitcnt lgkmcnt(0)")
    srd(a, 12, 4, 5, 0, 512*3584)
    srd(a, 16, 6, 7, 0, 512*3584)
    srd(a, 32, 8, 9, WS_MOD, SZ_MOD)
    srd(a, 36, 8, 9, WS_WP, SZ_WP)
    srd(a, 40, 8, 9, WS_UT, SZ_UT)
    a("s_mov_b32 m0, s22")
    for j in range(4):
        a(f"buffer_load_dwordx4 v{4+j}, s[12:15], s21 offen offset:{j*1024} lds")
    a("s_add_u32 m0, s22, 4224")
    for j in range(4):
        a(f"buffer_load_dwordx4 v{4+j}, s[16:19], s21 offen offset:{j*1024} lds")
    a("s_add_u32 s24, s23, 6144")
    a("s_add_u32 s25, s23, 8192")
    for ks in range(8):
        r = 64 + ks*16
        a(f"buffer_load_dwordx4 v[{r}:{r+3}], v11, s[32:35], s24 offen offset:{ks*64}")
        a(f"buffer_load_dwordx4 v[{r+4}:{r+7}], v11, s[32:35], s24 offen offset:{ks*64+32}")
        a(f"buffer_load_dwordx4 v[{r+8}:{r+11}], v11, s[32:35], s25 offen offset:{ks*64}")
        a(f"buffer_load_dwordx4 v[{r+12}:{r+15}], v11, s[32:35], s25 offen offset:{ks*64+32}")
    a("v_bfe_u32 v8, v2, 2, 2")
    a("v_lshl_add_u32 v8, v10, 2, v8")
    a("v_lshlrev_b32 v12, 5, v8")
    a("v_and_b32 v8, 3, v2")
    a("v_lshl_add_u32 v12, v8, 3, v12")
    a("v_bfe_u32 v8, v2, 4, 1")
    a("v_mul_u32_u24 v8, 4224, v8")
    a("v_add3_u32 v12, v12, v8, s22")
    a("s_mul_i32 s26, s2, 9363")
    a("s_lshr_b32 s26, s26, 16")
    a("s_mul_i32 s27, s26, 7")
    a("s_sub_u32 s27, s2, s27")
    a("s_lshl_b32 s28, s26, 5")
    a("s_lshl_b32 s29, s20, 3")
    a("s_add_u32 s28, s28, s29")
    a("s_mul_i32 s28, s28, 7")
    a("s_add_u32 s28, s28, s27")
    a("s_lshl_b32 s28, s28, 10")
    a("v_lshlrev_b32 v13, 4, v2")
    a("v_mov_b32 v14, 0")
    a("v_mov_b32 v15, 0")
    a("s_waitcnt vmcnt(32)")
    for ks in range(8):
        a(f"ds_read_b64_tr_b16 v[{16+ks*4}:{17+ks*4}], v12 offset:{ks*512}")
        a(f"ds_read_b64_tr_b16 v[{18+ks*4}:{19+ks*4}], v12 offset:{ks*512+256}")
    for ks in range(8):
        r = 64 + ks*16; w = 16 + ks*4
        a(f"s_waitcnt vmcnt({(7-ks)*4 + ks}) lgkmcnt({(7-ks)*2})")
        for d in range(4):
            a(f"v_lshlrev_b32 v{48+2*d}, 16, v{w+d}")
            a(f"v_and_b32 v{49+2*d}, 0xffff0000, v{w+d}")
        for e in range(8):
            a(f"v_fmac_f32 v15, v{48+e}, v{r+e}")
        for e in range(8):
            a(f"v_mul_f32 v{48+e}, v{48+e}, v{r+8+e}")
        for d in range(4):
            a(f"v_cvt_pk_bf16_f32 v{w+d}, v{48+2*d}, v{49+2*d}")
        a(f"s_add_u32 s29, s28, {ks*7168}")
        a(f"buffer_store_dwordx4 v[{w}:{w+3}], v13, s[36:39], s29 offen")
        for d in range(4):
            a(f"v_lshlrev_b32 v{56+2*d}, 16, v{w+d}")
            a(f"v_and_b32 v{57+2*d}, 0xffff0000, v{w+d}")
        for e in range(8):
            a(f"v_add_f32 v14, v14, v{56+e}")
    for r in (14, 15):
        a(f"v_mov_b32 v48, v{r}")
        a(f"v_permlane32_swap_b32 v{r}, v48")
        a(f"v_add_f32 v{r}, v{r}, v48")
    LR = 36864
    a("v_lshlrev_b32 v8, 3, v2")
    a("s_lshl_b32 s30, s20, 9")
    a(f"s_add_u32 s30, s30, {LR}")
    a("v_add_u32 v8, s30, v8")
    a("ds_write_b64 v8, v[14:15]")
    a("s_waitcnt lgkmcnt(0)")
    a("s_barrier")
    a("v_cmp_gt_u32 vcc, 32, v0")
    a("s_and_saveexec_b64 s[44:45], vcc")
    a("s_cbranch_execz L_kw_end")
    a("v_lshlrev_b32 v8, 3, v0")
    for w in range(4):
        a(f"ds_read_b64 v[{16+2*w}:{17+2*w}], v8 offset:{LR + w*512}")
    a("s_waitcnt lgkmcnt(0)")
    a("v_pk_add_f32 v[16:17], v[16:17], v[18:19]")
    a("v_pk_add_f32 v[20:21], v[20:21], v[22:23]")
    a("v_pk_add_f32 v[16:17], v[16:17], v[20:21]")
    a("v_lshrrev_b32 v8, 4, v0")
    a("v_lshlrev_b32 v8, 7, v8")
    a("v_and_b32 v9, 15, v0")
    a("v_lshl_add_u32 v8, v9, 2, v8")
    a("s_lshl_b32 s30, s2, 8")
    a("buffer_store_dword v16, v8, s[40:43], s30 offen")
    a("buffer_store_dword v17, v8, s[40:43], s30 offen offset:64")
    a.label("L_kw_end")
    a("s_endpgm")
    a.pad()
    return n, a.text(), kdesc(n, 192, 48), f"; @launch kernel={n} grid=(112,1,1) block=(256,1,1) lds=40960"

def k_gu():
    a = Asm(); n = "k3_gu_kernel"
    NST = 5; CH = 28672; LU = NST * CH
    a(khead(n))
    a("s_cmp_ge_u32 s2, 256")
    a("s_cbranch_scc1 L_k3_end")
    a(f"s_load_dwordx2 s[8:9], s[0:1], {KA_WS}")
    a("v_lshrrev_b32 v1, 6, v0")
    a("v_and_b32 v2, 63, v0")
    a("v_readfirstlane_b32 s20, v1")
    a("s_and_b32 s21, s2, 7")
    a("s_lshr_b32 s22, s2, 3")
    a("s_and_b32 s23, s21, 1")
    a("s_lshl_b32 s23, s23, 3")
    a("s_and_b32 s24, s22, 7")
    a("s_add_u32 s23, s23, s24")
    a("s_lshr_b32 s24, s21, 1")
    a("s_lshl_b32 s24, s24, 2")
    a("s_lshr_b32 s25, s22, 3")
    a("s_add_u32 s24, s24, s25")
    a("s_lshl_b32 s25, s23, 2")
    a("s_add_u32 s25, s25, s20")
    a("v_lshlrev_b32 v3, 4, v2")
    a("s_lshl_b32 s26, s25, 15")
    a("s_lshl_b32 s27, s25, 12")
    a(f"s_mul_i32 s28, s24, {32*7168}")
    a("s_mul_i32 s29, s20, 7168")
    a("s_add_u32 s28, s28, s29")
    a("s_mul_i32 s30, s24, 1792")
    a("s_waitcnt lgkmcnt(0)")
    srd(a, 12, 8, 9, WS_X1, SZ_X1)
    srd(a, 16, 8, 9, WS_WP, SZ_WP)
    srd(a, 32, 8, 9, WS_ST, SZ_ST)
    srd(a, 36, 8, 9, WS_UT, SZ_UT)
    srd(a, 40, 8, 9, WS_HH, SZ_HH)
    order = []
    def dma_chunk(c):
        st = c % NST
        for h, cnt in ((0, 4), (4, 3)):
            a(f"s_add_u32 m0, s29, {st*CH + h*1024}")
            a(f"s_add_u32 s31, s28, {c*CH + h*1024}")
            for j in range(cnt):
                a(f"buffer_load_dwordx4 v3, s[16:19], s31 offen offset:{j*1024} lds")
        order.extend([("c", c)] * 7)
    def aload(k0):
        a(f"s_add_u32 s31, s26, {k0*1024}")
        for j in range(4):
            k = k0 + j
            a(f"buffer_load_dwordx4 a[{4*k}:{4*k+3}], v3, s[12:15], s31 offen offset:{j*1024}")
        order.extend([("a", k0//4)] * 4)
    for c in range(NST):
        dma_chunk(c); aload(4*c)
    for c in range(NST, 8): aload(4*c)
    for j in range(4):
        a(f"buffer_load_dwordx4 v[{176+4*j}:{179+4*j}], v3, s[32:35], s27 offen offset:{j*1024}")
    order.extend([("s", 0)] * 4)
    a(f"s_mov_b32 m0, {LU}")
    a("buffer_load_dwordx4 v3, s[36:39], s30 offen lds")
    a("buffer_load_dwordx4 v3, s[36:39], s30 offen offset:1024 lds")
    order.extend([("u", 0)] * 2)
    def wait_for(tags):
        last = max(i for i, o in enumerate(order) if o in tags)
        return min(63, len(order) - 1 - last)
    ACC = 0+8
    WF = [120, 148]
    a(f"v_add_u32 v5, {2*CH}, v3")
    a(f"v_add_u32 v6, {4*CH}, v3")
    def reads(s):
        c, ks = s // 4, s % 4
        st = c % NST
        vb = (3, 3, 5, 5, 6)[st]; so = (st % 2) * CH if st < 4 else 0
        f = WF[s % 2]
        for j in range(7):
            a(f"ds_read_b128 v[{f+4*j}:{f+4*j+3}], v{vb} offset:{so + ks*7168 + j*1024}")
    def mfmas(s):
        f = WF[s % 2]
        for j in range(7):
            r = ACC + 16*j
            C = "0" if s == 0 else f"v[{r}:{r+15}]"
            a(f"v_mfma_f32_32x32x16_bf16 v[{r}:{r+15}], v[{f+4*j}:{f+4*j+3}], a[{4*s}:{4*s+3}], {C}")
    issued = NST
    a(f"s_waitcnt vmcnt({wait_for([('c',0),('a',0)])})")
    a("s_barrier")
    reads(0)
    for s in range(32):
        pend = None
        if s + 1 < 32:
            if (s + 1) % 4 == 0:
                c = (s + 1) // 4
                a(f"s_waitcnt lgkmcnt(0) vmcnt({wait_for([('c',c),('a',c)])})")
                a("s_barrier")
                reads(s + 1)
                if issued < 8: pend = issued
            else:
                reads(s + 1)
                a("s_waitcnt lgkmcnt(7)")
        else:
            a("s_waitcnt lgkmcnt(0)")
        mfmas(s)
        if pend is not None:
            dma_chunk(pend); issued += 1
    a("s_waitcnt vmcnt(0)")
    a("v_add_f32 v192, v176, v178")
    for b in range(2, 8):
        a(f"v_add_f32 v192, v192, v{176+2*b}")
    a("v_mov_b32 v193, v192")
    a("v_permlane32_swap_b32 v192, v193")
    a("v_add_f32 v192, v192, v193")
    a(f"v_mul_f32 v192, {f2u(1/16):#x}, v192")
    a("v_mov_b32 v194, 0")
    a("v_mov_b32 v195, 0")
    for b in range(8):
        a(f"v_sub_f32 v{176+2*b}, v{176+2*b}, v192")
        a(f"v_fmac_f32 v194, v{176+2*b}, v{176+2*b}")
        a(f"v_add_f32 v195, v195, v{177+2*b}")
    a(f"v_fmac_f32 v195, {f2u(32.0):#x}, v194")
    a("v_mov_b32 v193, v195")
    a("v_permlane32_swap_b32 v195, v193")
    a("v_add_f32 v195, v195, v193")
    a(f"v_mul_f32 v195, {f2u(1/512):#x}, v195")
    bf16r(a, 195)
    a(f"v_add_f32 v195, {f2u(1e-5):#x}, v195")
    bf16r(a, 195)
    a("v_sqrt_f32 v195, v195")
    bf16r(a, 195)
    a("v_rcp_f32 v196, v195")
    bf16r(a, 192)
    a("v_mul_f32 v198, v192, v196")
    a("s_barrier")
    a("v_lshrrev_b32 v7, 5, v2")
    a("v_lshlrev_b32 v7, 4, v7")
    a(f"v_add_u32 v7, {LU}, v7")
    a(f"s_mul_i32 s44, s25, {112*1024}")
    a("s_mul_i32 s45, s24, 7168")
    a("s_add_u32 s44, s44, s45")
    U = 120
    UB = [120, 200]
    def uread(j):
        u = UB[j % 2]
        for vi in range(4):
            a(f"ds_read_b128 v[{u+vi*8}:{u+vi*8+3}], v7 offset:{j*256 + vi*64}")
            a(f"ds_read_b128 v[{u+vi*8+4}:{u+vi*8+7}], v7 offset:{j*256 + vi*64 + 32}")
    uread(0)
    for j in range(7):
        u = UB[j % 2]; r = ACC + 16*j
        if j + 1 < 7:
            uread(j + 1); a("s_waitcnt lgkmcnt(8)")
        else:
            a("s_waitcnt lgkmcnt(0)")
        for h in range(2):
            for d in range(4):
                uu = u + h*16 + 2*d; tt = uu + 8; rr = r + h*8 + 2*d
                a(f"v_pk_fma_f32 v[{tt}:{tt+1}], v[{uu}:{uu+1}], v[198:199], v[{tt}:{tt+1}] op_sel_hi:[1,0,1] neg_lo:[1,0,0] neg_hi:[1,0,0]")
                a(f"v_pk_fma_f32 v[{rr}:{rr+1}], v[{rr}:{rr+1}], v[196:197], v[{tt}:{tt+1}] op_sel_hi:[1,0,1]")
        for e in range(8):
            a(f"v_max_f32 v{r+e}, 0, v{r+e}")
        for d in range(4):
            a(f"v_pk_mul_f32 v[{r+2*d}:{r+2*d+1}], v[{r+2*d}:{r+2*d+1}], v[{r+8+2*d}:{r+9+2*d}]")
        for d in range(4):
            a(f"v_cvt_pk_bf16_f32 v{r+8+d}, v{r+2*d}, v{r+2*d+1}")
        if j == 4: a("s_add_u32 s44, s44, 4096")
        a(f"buffer_store_dwordx4 v[{r+8}:{r+11}], v3, s[40:43], s44 offen offset:{(j%4)*1024}")
    a.label("L_k3_end")
    a("s_endpgm")
    a.pad()
    return n, a.text(), kdesc(n, 384, 48, 256), f"; @launch kernel={n} grid=(256,1,1) block=(256,1,1) lds={LU+2048}"

def build(ks, path):
    hdr = open("cdna_kernels/" + NAME + ".s.ref").read().split("\n")
    hdr = [l for l in hdr if l.startswith(";") and "@launch" not in l and "Override" not in l and "grid=ceil" not in l]
    out = hdr + [k[3] for k in ks]
    out.append('.amdgcn_target "amdgcn-amd-amdhsa--gfx950"\n.text')
    seen = set()
    for k in ks:
        if k[0] in seen: continue
        seen.add(k[0]); out.append(k[1])
    out.append('.section .rodata,"a"')
    seen = set()
    for k in ks:
        if k[0] in seen: continue
        seen.add(k[0]); out.append(k[2])
    open(path, "w").write("\n".join(out) + "\n")

if __name__ == "__main__":
    ks = [k_mod(), k_qkv_full(), k_pw(), k_gemm64("wo"), k_gu(), k_gemm64("down")]
    build(ks, "cdna_kernels/" + NAME + ".s")
```

```python
from g2lib import *
def k_prep(probes=False):
    a = K(); n = "ka_prep_kernel"; a.probes_on = probes
    a(khead(n))
    a("s_cmp_ge_u32 s2, 448")
    a("s_cbranch_scc1 L_ka_end")
    a("s_load_dwordx4 s[4:7], s[0:1], 56")
    a("s_load_dwordx2 s[8:9], s[0:1], 88")
    a("s_load_dwordx2 s[10:11], s[0:1], 0")
    a("s_cmp_ge_u32 s2, 192")
    a("s_cbranch_scc1 L_ka_ln")
    a("s_and_b32 s20, s2, 7")
    a("s_lshr_b32 s21, s2, 3")
    a("s_mul_i32 s20, s20, 6")
    a("s_lshr_b32 s22, s21, 2")
    a("s_add_u32 s20, s20, s22")
    a("s_lshl_b32 s20, s20, 1")
    a("s_and_b32 s22, s21, 1")
    a("s_add_u32 s20, s20, s22")
    a("s_bfe_u32 s21, s21, 0x10001")
    a("v_lshrrev_b32 v1, 2, v0")
    a("v_and_b32 v2, 3, v0")
    a("v_mul_u32_u24 v3, 6144, v1")
    a("v_lshl_add_u32 v3, v2, 4, v3")
    a("v_lshlrev_b32 v4, 1, v1")
    a(f"s_mul_i32 s23, s21, {256*6144}")
    a("s_lshl_b32 s24, s20, 6")
    a("s_add_u32 s23, s23, s24")
    a("s_lshl_b32 s24, s21, 9")
    a("s_waitcnt lgkmcnt(0)")
    srd(a, 16, 6, 512 * 6144)
    srd(a, 12, 4, 1024)
    for i in range(4):
        a.vm(f"buffer_load_ushort v{8+i}, v4, s[12:15], s24 offen offset:{i*128}", "c")
    for i in range(4):
        if i: a(f"s_add_u32 s23, s23, {64*6144}")
        a.vm(f"buffer_load_dwordx4 v[{16+4*i}:{19+4*i}], v3, s[16:19], s23 offen", f"w{i}")
    srd(a, 28, 8, WS_SIZE)
    a(f"s_mov_b32 s25, {f2u(-LOG2E):#x}")
    a("v_lshrrev_b32 v5, 4, v0")
    a("v_lshlrev_b32 v5, 7, v5")
    a("v_lshl_add_u32 v5, v2, 5, v5")
    a("v_and_b32 v6, 12, v0")
    a("v_cmp_eq_u32 vcc, 0, v6")
    a("v_lshlrev_b32 v7, 2, v0")
    a.wait(vm=["c"])
    for i in range(4): a(f"v_lshlrev_b32 v{8+i}, 16, v{8+i}")
    for i in range(4): a(f"v_mul_f32 v{48+i}, s25, v{8+i}")
    for i in range(4): a(f"v_exp_f32 v{48+i}, v{48+i}")
    for i in range(4): a(f"v_add_f32 v{48+i}, 1.0, v{48+i}")
    for i in range(4): a(f"v_rcp_f32 v{48+i}, v{48+i}")
    for i in range(4): a(f"v_mul_f32 v{8+i}, v{8+i}, v{48+i}")
    for i in range(4): bf16r(a, 8+i)
    for i in range(4):
        a.wait(vm=[f"w{i}"])
        for d in range(4):
            src = 16 + 4*i + d
            a(f"v_lshlrev_b32 v{32+2*d}, 16, v{src}")
            a(f"v_and_b32 v{33+2*d}, 0xffff0000, v{src}")
        for e in range(8):
            a(f"v_{'mul' if i == 0 else 'fmac'}_f32 v{56+e}, v{8+i}, v{32+e}")
    for sh in (4, 8):
        for d in range(8):
            a(f"v_add_f32_dpp v{56+d}, v{56+d}, v{56+d} row_ror:{sh} row_mask:0xf bank_mask:0xf")
    a("s_and_saveexec_b64 s[26:27], vcc")
    a("ds_write_b128 v5, v[56:59]")
    a("ds_write_b128 v5, v[60:63] offset:16")
    a("s_mov_b64 exec, s[26:27]")
    a("s_waitcnt lgkmcnt(0)")
    a("s_barrier")
    a("v_cmp_gt_u32 vcc, 32, v0")
    a("s_and_saveexec_b64 s[26:27], vcc")
    a("s_cbranch_execz L_ka_end")
    for p in range(16):
        a(f"ds_read_b32 v{16+p}, v7 offset:{p*128}")
    a(f"s_mul_i32 s23, s21, 12288")
    a("s_lshl_b32 s24, s20, 7")
    a("s_add_u32 s23, s23, s24")
    a("s_waitcnt lgkmcnt(0)")
    for st in (8, 4, 2, 1):
        for p in range(st):
            a(f"v_add_f32 v{16+p}, v{16+p}, v{16+p+st}")
    a(f"buffer_store_dword v16, v7, s[28:31], s23 offen offset:{WS_MODP}")
    a("s_endpgm")
    a.label("L_ka_ln")
    a.vmq = []
    a("s_sub_u32 s20, s2, 192")
    a("s_and_b32 s21, s20, 7")
    a("s_lshr_b32 s22, s20, 3")
    return a, n

def k_prep_full(lnmap, probes=False):
    a, n = k_prep(probes)
    lnmap(a)
    a("s_bfe_u32 s24, s22, 0x20001")
    a("s_and_b32 s25, s22, 1")
    a("v_lshrrev_b32 v1, 6, v0")
    a("v_and_b32 v2, 63, v0")
    a("v_readfirstlane_b32 s26, v1")
    a("s_lshl_b32 s27, s25, 3")
    a("s_lshl_b32 s26, s26, 1")
    a("s_add_u32 s27, s27, s26")
    a("s_lshl_b32 s32, s23, 6")
    a("s_lshr_b32 s33, s24, 1")
    a("s_lshl_b32 s33, s33, 5")
    a("s_add_u32 s32, s32, s33")
    a("s_and_b32 s33, s24, 1")
    a("s_add_u32 s32, s32, s33")
    a("s_lshl_b32 s33, s27, 1")
    a("s_add_u32 s32, s32, s33")
    a("s_lshl_b32 s32, s32, 10")
    a("v_lshlrev_b32 v3, 4, v2")
    a("s_waitcnt lgkmcnt(0)")
    srd(a, 12, 10, 2048 * 1024)
    a.vm("buffer_load_dwordx4 v[8:11], v3, s[12:15], s32 offen", "x0")
    a.vm("buffer_load_dwordx4 v[12:15], v3, s[12:15], s32 offen offset:2048", "x1")
    srd(a, 28, 8, WS_SIZE)
    a("v_mov_b32 v16, 0"); a("v_mov_b32 v17, 0"); a("v_mov_b32 v18, 0"); a("v_mov_b32 v19, 0")
    a("s_lshl_b32 s34, s20, 6")
    a(f"s_add_u32 s34, s34, {WS_FLAGS}")
    a("v_cmp_gt_u32 vcc, 4, v0")
    a("s_and_saveexec_b64 s[36:37], vcc")
    a("s_cbranch_execz L_ka_nz")
    a("buffer_store_dwordx4 v[16:19], v3, s[28:31], s34 offen")
    a.label("L_ka_nz")
    a("s_mov_b64 exec, s[36:37]")
    a("v_lshlrev_b32 v4, 8, v2")
    a("s_lshl_b32 s35, s23, 2")
    a("s_add_u32 s35, s35, s24")
    a("s_lshl_b32 s35, s35, 14")
    a("s_lshl_b32 s33, s27, 4")
    a("s_add_u32 s35, s35, s33")
    a(f"s_add_u32 s35, s35, {WS_XN}")
    a("s_waitcnt vmcnt(0)")
    R = [(8, 24, 40), (12, 32, 44)]
    def both(f):
        for r in R: f(*r)
    def unp(s, u, t):
        for d in range(4):
            a(f"v_lshlrev_b32 v{u+2*d}, 16, v{s+d}")
            a(f"v_and_b32 v{u+2*d+1}, 0xffff0000, v{s+d}")
        a(f"v_add_f32 v{t}, v{u}, v{u+1}")
        a(f"v_add_f32 v{t+1}, v{u+2}, v{u+3}")
        a(f"v_add_f32 v{t+2}, v{u+4}, v{u+5}")
        a(f"v_add_f32 v{t+3}, v{u+6}, v{u+7}")
        a(f"v_add_f32 v{t}, v{t}, v{t+1}")
        a(f"v_add_f32 v{t+2}, v{t+2}, v{t+3}")
        a(f"v_add_f32 v{t}, v{t}, v{t+2}")
    both(unp)
    def wred(off):
        for sh in (8, 4, 2, 1):
            both(lambda s, u, t: a(f"v_add_f32_dpp v{t+off}, v{t+off}, v{t+off} row_ror:{sh} row_mask:0xf bank_mask:0xf"))
        for sw in ("16", "32"):
            both(lambda s, u, t: a(f"v_mov_b32 v{t+3}, v{t+off}"))
            both(lambda s, u, t: a(f"v_permlane{sw}_swap_b32 v{t+off}, v{t+3}"))
            both(lambda s, u, t: a(f"v_add_f32 v{t+off}, v{t+off}, v{t+3}"))
    wred(0)
    both(lambda s, u, t: a(f"v_mul_f32 v{t}, {f2u(1/512):#x}, v{t}"))
    def var(s, u, t):
        for e in range(8):
            a(f"v_sub_f32 v{t+2}, v{u+e}, v{t}")
            a(f"v_{'mul' if e == 0 else 'fmac'}_f32 v{t+1}, v{t+2}, v{t+2}")
    both(var)
    wred(1)
    def fin(s, u, t):
        a(f"v_mul_f32 v{t+1}, {f2u(1/512):#x}, v{t+1}")
        bf16r(a, t+1)
        a(f"v_add_f32 v{t+1}, {f2u(1e-5):#x}, v{t+1}")
        bf16r(a, t+1)
        a(f"v_sqrt_f32 v{t+1}, v{t+1}")
        bf16r(a, t)
        bf16r(a, t+1)
        a(f"v_rcp_f32 v{t+1}, v{t+1}")
        for e in range(8):
            a(f"v_sub_f32 v{u+e}, v{u+e}, v{t}")
        for d in range(4):
            a(f"v_cvt_pk_bf16_f32 v{s+d}, v{u+2*d}, v{u+2*d+1}")
        for d in range(4):
            a(f"v_lshlrev_b32 v{u+2*d}, 16, v{s+d}")
            a(f"v_and_b32 v{u+2*d+1}, 0xffff0000, v{s+d}")
        for e in range(8):
            a(f"v_mul_f32 v{u+e}, v{u+e}, v{t+1}")
        for d in range(4):
            a(f"v_cvt_pk_bf16_f32 v{s+d}, v{u+2*d}, v{u+2*d+1}")
    both(fin)
    a("buffer_store_dwordx4 v[8:11], v4, s[28:31], s35 offen")
    a("buffer_store_dwordx4 v[12:15], v4, s[28:31], s35 offen offset:16")
    a.label("L_ka_end")
    a("s_endpgm")
    a.pad()
    return n, a.text(), kdesc(n, 72, 48), f"; @launch kernel={n} grid=(448,1,1) block=(256,1,1) lds=2048"
```

```python
from g2lib import *
def prologue(a, n):
    a(khead(n))
    a("s_cmp_ge_u32 s2, 256")
    a(f"s_cbranch_scc1 L_{n}_end")
    a("s_load_dwordx8 s[4:11], s[0:1], 0")
    a("s_load_dwordx8 s[12:19], s[0:1], 32")
    a("s_load_dwordx2 s[20:21], s[0:1], 72")
    a("s_load_dwordx2 s[24:25], s[0:1], 88")
    a("v_lshrrev_b32 v2, 6, v0")
    a("v_and_b32 v1, 63, v0")
    a("v_readfirstlane_b32 s26, v2")
    a("s_and_b32 s27, s26, 3")

def prologue2(a):
    a("s_waitcnt lgkmcnt(0)")
    srd(a, 28, 24, WS_SIZE)

def finish(a, n, lds=163840):
    a.label(f"L_{n}_end")
    a("s_endpgm")
    a.pad()
    return n, a.text(), kdesc(n, 256, 102, 256), f"; @launch kernel={n} grid=(256,1,1) block=(512,1,1) lds={lds}"

def map2(a, d0, d1, nx0, n0, n1):
    l = lambda v: v.bit_length() - 1
    a("s_and_b32 s60, s2, 7")
    a("s_lshr_b32 s61, s2, 3")
    a(f"s_and_b32 s{d0}, s60, {nx0-1}")
    a(f"s_lshl_b32 s{d0}, s{d0}, {l(n0)}")
    a(f"s_and_b32 s59, s61, {n0-1}")
    a(f"s_add_u32 s{d0}, s{d0}, s59")
    a(f"s_lshr_b32 s{d1}, s60, {l(nx0)}")
    a(f"s_lshl_b32 s{d1}, s{d1}, {l(n1)}")
    a(f"s_lshr_b32 s59, s61, {l(n0)}")
    a(f"s_add_u32 s{d1}, s{d1}, s59")

CFG = dict(qkv=(4, 8, 4), wo=(8, 4, 8), gu=(2, 8, 4), sc1=True)
def SC(): return " sc1" if CFG['sc1'] else ""

QST = 34816; QMODV = 139264; QUTW = 143360; QUTV = 159744
def qkv_phase(a, L):
    map2(a, 44, 45, *CFG['qkv'])
    a("v_lshrrev_b32 v4, 3, v1")
    a("v_and_b32 v5, 7, v1")
    a("v_and_b32 v6, 2, v4")
    a("v_xor_b32 v5, v5, v6")
    a("s_lshl_b32 s46, s26, 2")
    a("s_and_b32 s46, s46, 4")
    a("v_xor_b32 v5, s46, v5")
    a("v_mul_u32_u24 v3, 3072, v4")
    a("v_lshl_add_u32 v3, v5, 4, v3")
    a("s_lshl_b32 s46, s45, 7")
    a("s_mul_i32 s47, s27, 24576")
    a("s_add_u32 s47, s47, s46")
    a("s_mul_i32 s48, s27, 3072")
    a("s_add_u32 s48, s48, 10240")
    a("v_lshlrev_b32 v2, 4, v1")
    prologue2(a)
    srd(a, 32, 6, 512 * 3072)
    def dma_chunk(c):
        st = c % 4
        for i in range(2):
            a(f"s_add_u32 m0, s48, {st*QST + i*4*3072}")
            a(f"s_add_u32 s49, s47, {(c*64 + i*32)*3072}")
            for p in range(3):
                a.vm(f"buffer_load_dwordx4 v3, s[32:35], s49 offen offset:{p*1024} lds", f"W{c}")
    a("s_cmp_ge_u32 s26, 4")
    a(f"s_cbranch_scc1 {L}_H")
    snap = a.snap()
    a("s_lshl_b32 s50, s26, 10")
    a.vm(f"buffer_load_dwordx4 v[8:11], v2, s[28:31], s50 offen offset:{WS_MODP}", "mp")
    a("s_add_u32 s51, s50, 12288")
    a.vm(f"buffer_load_dwordx4 v[12:15], v2, s[28:31], s51 offen offset:{WS_MODP}", "mp")
    dma_chunk(0); dma_chunk(1)
    BI = 200
    a("v_and_b32 v4, 15, v1")
    a("v_lshrrev_b32 v5, 4, v1")
    a(f"v_mov_b32 v6, {NEG:#x}")
    a("v_lshlrev_b32 v7, 2, v5")
    a("v_sub_u32 v16, v4, v7")
    a("v_cmp_gt_u32 s[52:53], 2, v5")
    for r in range(4):
        a(f"v_subrev_u32 v17, {r}, v16")
        a("v_cmp_ge_u32 vcc, 7, v17")
        a(f"v_cndmask_b32_e64 v{BI+r}, v6, 0, vcc")
        a("v_cmp_ge_i32 vcc, -9, v17")
        a(f"v_cndmask_b32_e64 v{BI+4+r}, v6, 0, vcc")
        a(f"v_mov_b32 v{BI+12+r}, v{BI+4+r}")
        a("v_cmp_ge_i32 vcc, -1, v17")
        a("s_and_b64 vcc, vcc, s[52:53]")
        a(f"v_cndmask_b32_e64 v{BI+8+r}, v6, 0, vcc")
    a("s_cmp_lg_u32 s44, 0")
    a(f"s_cbranch_scc1 {L}_nb")
    for r in range(8): a(f"v_mov_b32 v{BI+8+r}, v6")
    a.label(f"{L}_nb")
    a("v_mov_b32 v216, v2")
    a(f"v_add_u32 v217, {2*QST}, v2")
    a("v_bfe_u32 v16, v1, 2, 2")
    a("v_lshrrev_b32 v17, 1, v16")
    a("v_and_b32 v18, 1, v5")
    a("v_lshl_or_b32 v17, v18, 1, v17")
    a("v_xor_b32 v17, s26, v17")
    a("v_mul_u32_u24 v218, 3072, v5")
    a("v_lshl_add_u32 v218, v16, 7, v218")
    a("v_lshl_add_u32 v218, v17, 5, v218")
    a("v_and_b32 v18, 3, v1")
    a("v_lshl_add_u32 v218, v18, 3, v218")
    a("v_add_u32 v218, 10240, v218")
    a(f"v_add_u32 v219, {2*QST}, v218")
    a("v_lshrrev_b32 v16, 5, v1")
    a("v_lshlrev_b32 v220, 14, v16")
    a("v_and_b32 v16, 31, v1")
    a("v_lshl_add_u32 v220, v16, 4, v220")
    a("s_lshl_b32 s54, s44, 16")
    a("s_lshl_b32 s55, s45, 11")
    a("s_add_u32 s54, s54, s55")
    a("s_lshl_b32 s55, s26, 9")
    a("s_add_u32 s54, s54, s55")
    a(f"s_add_u32 s54, s54, {WS_O}")
    a("s_add_u32 s55, s54, 32768")
    a(f"s_add_u32 s50, s50, {QMODV}")
    a("v_add_u32 v16, s50, v2")
    a.wait(vm=["mp"])
    for e in range(4): a(f"v_add_f32 v{8+e}, v{8+e}, v{12+e}")
    for e in range(4): bf16r(a, 8+e)
    a("s_cmp_lt_u32 s26, 2")
    a(f"s_cbranch_scc1 {L}_n1")
    for e in range(4): a(f"v_add_f32 v{8+e}, 1.0, v{8+e}")
    for e in range(4): bf16r(a, 8+e)
    a.label(f"{L}_n1")
    a.lg("ds_write_b128 v16, v[8:11]")
    a.wait(lg='all')
    a("s_barrier")
    dma_chunk(2)
    ACC = 16; FR = [72, 104]
    accQ = lambda t: ACC + (t-1)*4
    accK = lambda t: ACC + (4+t)*4
    accV = lambda t: ACC + (9+t)*4
    def reads(s):
        c, ks = s // 2, s % 2
        st = c % 4; f = FR[s % 2]
        va, vb = (216, 218) if st < 2 else (217, 219)
        so = (st % 2) * QST
        def rb(p):
            return [(f"ds_read_b64_tr_b16 v[{f+20+p*4+e*2}:{f+21+p*4+e*2}], v{vb} offset:{so + ks*12288 + p*1024 + e*512}", f"B{s}_{p}") for e in range(2)]
        def ra(t):
            return [(f"ds_read_b128 v[{f+t*4}:{f+t*4+3}], v{va} offset:{so + (ks*5+t)*1024}", f"A{s}_{t}")]
        return rb(1) + ra(0) + rb(2) + ra(1) + rb(0) + ra(2) + ra(3) + ra(4)
    def mfmas(s):
        f = FR[s % 2]; out = []
        C = lambda r: "0" if s == 0 else f"v[{r}:{r+3}]"
        for t in range(5):
            A = f"v[{f+t*4}:{f+t*4+3}]"
            B = lambda p: f"v[{f+20+4*p}:{f+23+4*p}]"
            r = accK(t); out.append((f"v_mfma_f32_16x16x32_bf16 v[{r}:{r+3}], {B(1)}, {A}, {C(r)}", [f"B{s}_1", f"A{s}_{t}"]))
            r = accV(t); out.append((f"v_mfma_f32_16x16x32_bf16 v[{r}:{r+3}], {A}, {B(2)}, {C(r)}", [f"B{s}_2", f"A{s}_{t}"]))
            if t > 0:
                r = accQ(t); out.append((f"v_mfma_f32_16x16x32_bf16 v[{r}:{r+3}], {B(0)}, {A}, {C(r)}", [f"B{s}_0", f"A{s}_{t}"]))
        return out
    def inter(rd, mf):
        rd = list(rd)
        for m, need_ in mf:
            a.wait(lg=need_)
            a(m)
            if rd:
                t, g = rd.pop(0); a.lg(t, g)
        for t, g in rd: a.lg(t, g)
    for c in range(8):
        a.wait(vm=[f"W{c}"], lg='all')
        a("s_barrier")
        a.probe(1 + c) if c in (0, 1, 2, 4, 7) else None
        inter(reads(2*c), mfmas(2*c-1) if c else [])
        inter(reads(2*c+1), mfmas(2*c))
    inter([], mfmas(15))
    a.probe(9)
    PQ = 72; PK = 80; VO = 100; SR = 116; M = 148; PP = 164; OO = 180
    for t in range(1, 5):
        r = accQ(t)
        a(f"v_cvt_pk_bf16_f32 v{PQ+(t-1)*2}, v{r}, v{r+1}")
        a(f"v_cvt_pk_bf16_f32 v{PQ+(t-1)*2+1}, v{r+2}, v{r+3}")
    for t in range(5):
        r = accK(t)
        a(f"v_cvt_pk_bf16_f32 v{PK+t*2}, v{r}, v{r+1}")
        a(f"v_cvt_pk_bf16_f32 v{PK+t*2+1}, v{r+2}, v{r+3}")
    prev = {1: 0, 2: 0, 3: 1, 4: 2}
    pb = {1: BI+8, 2: BI+12, 3: BI+4, 4: BI+4}
    for t in range(1, 5):
        s0 = SR + (t-1)*8; q = PQ + (t-1)*2
        kp = PK + prev[t]*2; ks = PK + t*2
        a(f"v_mfma_f32_16x16x16_bf16 v[{s0}:{s0+3}], v[{kp}:{kp+1}], v[{q}:{q+1}], v[{pb[t]}:{pb[t]+3}]")
        a(f"v_mfma_f32_16x16x16_bf16 v[{s0+4}:{s0+7}], v[{ks}:{ks+1}], v[{q}:{q+1}], v[{BI}:{BI+3}]")
    for t in range(1, 5):
        for h, tt in enumerate((prev[t], t)):
            r = accV(tt)
            a(f"v_cvt_pk_bf16_f32 v{VO+(t-1)*4+h*2}, v{r}, v{r+1}")
            a(f"v_cvt_pk_bf16_f32 v{VO+(t-1)*4+h*2+1}, v{r+2}, v{r+3}")
    a(f"s_mov_b32 s56, {f2u(0.25*LOG2E):#x}")
    T4 = range(1, 5)
    for t in T4:
        s0 = SR + (t-1)*8; m = M + (t-1)*4
        a(f"v_max3_f32 v{m}, v{s0}, v{s0+1}, v{s0+2}")
        a(f"v_max3_f32 v{m+1}, v{s0+3}, v{s0+4}, v{s0+5}")
        a(f"v_max3_f32 v{m}, v{m}, v{s0+6}, v{s0+7}")
        a(f"v_max_f32 v{m}, v{m}, v{m+1}")
    def xred(op):
        for sw in ("16", "32"):
            for t in T4: a(f"v_mov_b32 v{M+(t-1)*4+1}, v{M+(t-1)*4}")
            for t in T4: a(f"v_permlane{sw}_swap_b32 v{M+(t-1)*4}, v{M+(t-1)*4+1}")
            for t in T4: a(f"{op} v{M+(t-1)*4}, v{M+(t-1)*4}, v{M+(t-1)*4+1}")
    xred("v_max_f32")
    for t in T4:
        s0 = SR + (t-1)*8; m = M + (t-1)*4
        a(f"v_mul_f32 v{m}, s56, v{m}")
        for r in range(8): a(f"v_fma_f32 v{s0+r}, v{s0+r}, s56, -v{m}")
    for t in T4:
        for r in range(8): a(f"v_exp_f32 v{SR+(t-1)*8+r}, v{SR+(t-1)*8+r}")
    for t in T4:
        s0 = SR + (t-1)*8; m = M + (t-1)*4
        a(f"v_add_f32 v{m}, v{s0}, v{s0+1}")
        a(f"v_add_f32 v{m+1}, v{s0+2}, v{s0+3}")
        a(f"v_add_f32 v{m+2}, v{s0+4}, v{s0+5}")
        a(f"v_add_f32 v{m+3}, v{s0+6}, v{s0+7}")
        a(f"v_add_f32 v{m}, v{m}, v{m+1}")
        a(f"v_add_f32 v{m+2}, v{m+2}, v{m+3}")
        a(f"v_add_f32 v{m}, v{m}, v{m+2}")
    xred("v_add_f32")
    for t in T4: a(f"v_rcp_f32 v{M+(t-1)*4}, v{M+(t-1)*4}")
    for t in T4:
        s0 = SR + (t-1)*8; m = M + (t-1)*4
        for r in range(8): a(f"v_mul_f32 v{s0+r}, v{s0+r}, v{m}")
        for r in range(4): a(f"v_cvt_pk_bf16_f32 v{PP+(t-1)*4+r}, v{s0+2*r}, v{s0+2*r+1}")
        a(f"v_mfma_f32_16x16x32_bf16 v[{OO+(t-1)*4}:{OO+(t-1)*4+3}], v[{VO+(t-1)*4}:{VO+(t-1)*4+3}], v[{PP+(t-1)*4}:{PP+(t-1)*4+3}], 0")
    for hf in range(2):
        o = OO + hf*8; d = 72 + hf*4
        a(f"v_cvt_pk_bf16_f32 v{d}, v{o}, v{o+1}")
        a(f"v_cvt_pk_bf16_f32 v{d+1}, v{o+2}, v{o+3}")
        a(f"v_cvt_pk_bf16_f32 v{d+2}, v{o+4}, v{o+5}")
        a(f"v_cvt_pk_bf16_f32 v{d+3}, v{o+6}, v{o+7}")
        a(f"v_permlane32_swap_b32 v{d}, v{d+2}")
        a(f"v_permlane32_swap_b32 v{d+1}, v{d+3}")
        a.vm(f"buffer_store_dwordx4 v[{d}:{d+3}], v220, s[28:31], s{54+hf} offen{SC()}", "ost")
    a.probe(10)
    a(f"s_branch {L}_join")
    a.label(f"{L}_H")
    a.restore(snap)
    a("s_lshl_b32 s50, s44, 16")
    a("s_lshl_b32 s52, s27, 10")
    a("s_add_u32 s50, s50, s52")
    a(f"s_add_u32 s50, s50, {WS_XN}")
    a("s_max_u32 s51, s44, 1")
    a("s_sub_u32 s51, s51, s44")
    a("s_lshl_b32 s51, s51, 16")
    a("s_add_u32 s51, s51, s50")
    a("s_sub_u32 s51, s51, 65536")
    a("v_or_b32 v4, 128, v2")
    a("v_bfe_u32 v5, v1, 3, 1")
    a("v_lshl_add_u32 v4, v5, 14, v4")
    a("v_add_u32 v4, 32768, v4")
    XR = 16
    def xn_load(cp):
        for t in range(5):
            r = XR + cp*20 + t*4
            if t == 0:
                a(f"s_add_u32 s53, s51, {cp*4096}")
                a.vm(f"buffer_load_dwordx4 v[{r}:{r+3}], v4, s[28:31], s53 offen", f"x{cp}_{t}")
            else:
                a(f"s_add_u32 s53, s50, {cp*4096 + (t-1)*16384}")
                a.vm(f"buffer_load_dwordx4 v[{r}:{r+3}], v2, s[28:31], s53 offen", f"x{cp}_{t}")
    xn_load(0); xn_load(1)
    a("v_lshrrev_b32 v5, 4, v1")
    a("v_lshlrev_b32 v6, 5, v5")
    a("s_lshl_b32 s52, s27, 7")
    a(f"s_add_u32 s52, s52, {QMODV}")
    a("v_add_u32 v6, s52, v6")
    a("s_lshr_b32 s52, s27, 1")
    a(f"s_mul_i32 s52, s52, {QST}")
    a("s_and_b32 s53, s27, 1")
    a("s_mul_i32 s53, s53, 5120")
    a("s_add_u32 s52, s52, s53")
    a("v_add_u32 v7, s52, v2")
    a(f"v_add_u32 v8, {2*QST}, v7")
    def modulate(cp):
        for h in range(2):
            a.lg(f"ds_read_b128 v[{96+4*h}:{99+4*h}], v6 offset:{cp*512 + h*16}", "sa")
            a.lg(f"ds_read_b128 v[{104+4*h}:{107+4*h}], v6 offset:{2048 + cp*512 + h*16}", "sa")
        for t in range(5):
            r = XR + cp*20 + t*4; T = 112 + (t % 2)*8
            a.wait(vm=[f"x{cp}_{t}"])
            for d in range(4):
                a(f"v_lshlrev_b32 v{T+2*d}, 16, v{r+d}")
                a(f"v_and_b32 v{T+2*d+1}, 0xffff0000, v{r+d}")
            a.wait(lg=["sa"])
            for e in range(8):
                a(f"v_fma_f32 v{T+e}, v{T+e}, v{104+e}, v{96+e}")
            for d in range(4):
                a(f"v_cvt_pk_bf16_f32 v{r+d}, v{T+2*d}, v{T+2*d+1}")
            a.lg(f"ds_write_b128 v{7 + (cp % 2)}, v[{r}:{r+3}] offset:{t*1024}", "aw")
    def bar(c):
        a.wait(vm=[f"W{c}"], lg='all')
        a("s_barrier")
    a("s_barrier")
    modulate(0)
    dma_chunk(3); xn_load(2)
    bar(0)
    modulate(1)
    bar(1)
    dma_chunk(4); xn_load(3)
    bar(2)
    dma_chunk(5); modulate(2)
    bar(3)
    dma_chunk(6)
    bar(4)
    dma_chunk(7); modulate(3)
    ut_issue(a, L)
    bar(5); bar(6); bar(7)
    ut_compute(a, L)
    a.label(f"{L}_join")

def ut_issue(a, L):
    a("s_lshr_b32 s52, s44, 1")
    a("s_and_b32 s53, s44, 1")
    a("s_lshl_b32 s53, s53, 3")
    a("s_add_u32 s53, s53, s45")
    a("s_min_u32 s53, s53, 13")
    a("s_cmp_ge_u32 s53, 7")
    a("s_cselect_b32 s36, s14, s12")
    a("s_cselect_b32 s37, s15, s13")
    a(f"s_mov_b32 s38, {512*3584}")
    a("s_mov_b32 s39, 0x20000")
    a("s_cselect_b32 s54, 7, 0")
    a("s_cselect_b32 s56, 128, 0")
    a("s_sub_u32 s54, s53, s54")
    a("s_lshl_b32 s55, s52, 2")
    a("s_add_u32 s55, s55, s27")
    a("s_mul_i32 s55, s55, 7")
    a("s_add_u32 s55, s55, s54")
    a("s_lshl_b32 s55, s55, 8")
    a("s_add_u32 s56, s56, s55")
    a(f"s_add_u32 s56, s56, {WS_UTP}")
    a(f"s_mul_i32 s55, s27, {128*3584}")
    a("s_mul_i32 s52, s52, 224")
    a("s_add_u32 s55, s55, s52")
    a("s_lshl_b32 s54, s54, 5")
    a("s_add_u32 s55, s55, s54")
    a("v_lshrrev_b32 v9, 1, v1")
    a("v_mul_u32_u24 v9, 3584, v9")
    a("v_and_b32 v10, 1, v1")
    a("v_lshl_add_u32 v9, v10, 4, v9")
    a("s_lshl_b32 s57, s27, 12")
    a(f"s_add_u32 s57, s57, {QUTW}")
    for i in range(4):
        a(f"s_add_u32 m0, s57, {i*1024}")
        a(f"s_add_u32 s58, s55, {i*32*3584}")
        a.vm("buffer_load_dwordx4 v9, s[36:39], s58 offen lds", "utw")
    a("v_and_b32 v10, 31, v1")
    a("v_lshlrev_b32 v10, 4, v10")
    a("v_lshrrev_b32 v11, 5, v1")
    a("v_lshlrev_b32 v12, 11, v11")
    a("v_sub_u32 v10, v10, v12")
    a("v_add_u32 v10, 8192, v10")
    a("s_lshl_b32 s58, s27, 9")
    a.vm(f"buffer_load_dwordx4 v[128:131], v10, s[28:31], s58 offen offset:{WS_MODP}", "utv")
    a("s_add_u32 s58, s58, 12288")
    a.vm(f"buffer_load_dwordx4 v[132:135], v10, s[28:31], s58 offen offset:{WS_MODP}", "utv")

def ut_compute(a, L):
    a.wait(vm=["utv", "utw"])
    for e in range(4): a(f"v_add_f32 v{128+e}, v{128+e}, v{132+e}")
    for e in range(4): bf16r(a, 128+e)
    a("v_cmp_gt_u32 vcc, 32, v1")
    a("v_cndmask_b32_e64 v136, 0, 1.0, vcc")
    for e in range(4): a(f"v_add_f32 v{128+e}, v{128+e}, v136")
    a("v_cvt_pk_bf16_f32 v128, v128, v129")
    a("v_cvt_pk_bf16_f32 v129, v130, v131")
    a("s_lshl_b32 s58, s27, 9")
    a(f"s_add_u32 s58, s58, {QUTV}")
    a("v_lshlrev_b32 v10, 3, v1")
    a("v_add_u32 v10, s58, v10")
    a.lg("ds_write_b64 v10, v[128:129]")
    a("v_and_b32 v11, 1, v1")
    a("v_lshlrev_b32 v11, 8, v11")
    a("v_lshrrev_b32 v13, 4, v1")
    a("v_lshl_add_u32 v11, v13, 4, v11")
    a("v_add_u32 v11, s58, v11")
    a("v_and_b32 v12, 15, v1")
    a("v_lshlrev_b32 v12, 3, v12")
    a("v_lshl_add_u32 v12, v13, 8, v12")
    a("v_add_u32 v12, s57, v12")
    a.wait(lg='all')
    for s in range(4):
        a.lg(f"ds_read_b128 v[{140+8*s}:{143+8*s}], v11 offset:{s*64}", f"u{s}")
        a.lg(f"ds_read_b64_tr_b16 v[{144+8*s}:{145+8*s}], v12 offset:{s*1024}", f"u{s}")
        a.lg(f"ds_read_b64_tr_b16 v[{146+8*s}:{147+8*s}], v12 offset:{s*1024+128}", f"u{s}")
    for s in range(4):
        a.wait(lg=[f"u{s}"])
        a(f"v_mfma_f32_16x16x32_bf16 v[172:175], v[{144+8*s}:{147+8*s}], v[{140+8*s}:{143+8*s}], {'0' if s == 0 else 'v[172:175]'}")
    a("v_and_b32 v10, 15, v1")
    a("v_cmp_gt_u32 vcc, 2, v10")
    a("v_lshlrev_b32 v10, 6, v10")
    a("v_lshl_add_u32 v10, v13, 4, v10")
    a("s_and_saveexec_b64 s[58:59], vcc")
    a.vm(f"buffer_store_dwordx4 v[172:175], v10, s[28:31], s56 offen{SC()}", "ust")
    a("s_mov_b64 exec, s[58:59]")

def k_qkv(probes=False):
    a = K(); n = "kb1_qkv_kernel"; a.probes_on = probes
    prologue(a, n)
    qkv_phase(a, "L_q")
    return finish(a, n)

WLO = 65536
def wo_wdma(a, nw, wreg):
    a("v_lshrrev_b32 v10, 3, v1")
    a("v_and_b32 v11, 7, v1")
    a("v_and_b32 v12, 6, v10")
    a("v_xor_b32 v11, v11, v12")
    a("v_lshlrev_b32 v10, 10, v10")
    a("v_lshl_add_u32 v10, v11, 4, v10")
    srd(a, 36, 8, 512 * 1024)
    per = 64 // nw
    a(f"s_mul_i32 s46, s{wreg}, {per*8192}")
    a("s_lshl_b32 s47, s45, 7")
    a("s_add_u32 s46, s46, s47")
    a(f"s_mul_i32 s47, s{wreg}, {per*1024}")
    for i in range(per):
        a(f"s_add_u32 m0, s47, {i*1024}")
        a(f"s_add_u32 s48, s46, {i*8192}")
        a.vm("buffer_load_dwordx4 v10, s[36:39], s48 offen lds", "wo")

def wo_setup(a):
    a("s_and_b32 s46, s26, 1")
    a("s_lshr_b32 s47, s26, 1")
    a("v_and_b32 v3, 15, v1")
    a("v_lshrrev_b32 v4, 4, v1")
    a("v_lshlrev_b32 v2, 4, v1")
    srd(a, 32, 4, 2048 * 1024)
    a("v_lshlrev_b32 v5, 11, v3")
    a("v_lshl_add_u32 v5, v4, 3, v5")
    a("s_lshl_b32 s48, s44, 1")
    a("s_add_u32 s48, s48, s46")
    a("s_lshl_b32 s49, s45, 2")
    a("s_add_u32 s49, s49, s47")
    a("s_lshl_b32 s50, s48, 15")
    a("s_lshl_b32 s51, s49, 5")
    a("s_add_u32 s50, s50, s51")
    a.vm("buffer_load_dwordx2 v[200:201], v5, s[32:35], s50 offen", "ep")
    a.vm("buffer_load_dwordx2 v[202:203], v5, s[32:35], s50 offen offset:1024", "ep")
    a("v_lshlrev_b32 v6, 4, v4")
    a("s_lshl_b32 s51, s49, 6")
    for i, off in enumerate((2*2048, 12288 + 2*2048, 4*2048, 12288 + 4*2048)):
        a(f"s_add_u32 s52, s51, {WS_MODP + off}")
        a.vm(f"buffer_load_dwordx4 v[{204+4*i}:{207+4*i}], v6, s[28:31], s52 offen", "ep")
    a("v_bfe_u32 v8, v1, 2, 3")
    a("v_lshrrev_b32 v9, 5, v1")
    a("v_lshl_add_u32 v9, v9, 4, v8")
    a("v_lshlrev_b32 v7, 7, v9")
    a("v_lshrrev_b32 v8, 1, v8")
    a("v_xor_b32 v8, s47, v8")
    a("v_lshl_add_u32 v7, v8, 5, v7")
    a("v_and_b32 v8, 3, v1")
    a("v_lshl_add_u32 v7, v8, 3, v7")
    a("s_lshl_b32 s53, s47, 14")
    a("s_lshl_b32 s54, s46, 11")
    a("s_add_u32 s53, s53, s54")
    a("s_lshl_b32 s52, s44, 16")
    a("s_add_u32 s52, s52, s53")
    a(f"s_add_u32 s52, s52, {WS_O}")
    a(f"s_add_u32 s53, s53, {WLO}")
    a("s_lshl_b32 s54, s46, 15")
    a(f"s_add_u32 s54, s54, {WLO}")
    a("v_add_u32 v8, s54, v2")

def wo_preread(a):
    for s in range(16):
        for e in range(2):
            a.lg(f"ds_read_b64_tr_b16 v[{64+4*s+2*e}:{65+4*s+2*e}], v7 offset:{s*4096 + e*1024}", "wf")

def wo_main(a):
    for kc in range(4):
        a(f"s_add_u32 m0, s53, {kc*4096}")
        a(f"s_add_u32 s54, s52, {kc*4096}")
        for e in range(2):
            a.vm(f"buffer_load_dwordx4 v2, s[28:31], s54 offen offset:{e*1024}{SC()} lds", f"o{kc}")
    def mf(kc):
        for s4 in range(4):
            s = 4*kc + s4
            for par in range(2):
                f = 128 + (kc % 2)*32 + (s4*2 + par)*4; r = 192 + 4*par
                a.wait(lg=[f"of{s}_{par}", "wf"])
                a(f"v_mfma_f32_16x16x32_bf16 v[{r}:{r+3}], v[{64+4*s}:{67+4*s}], v[{f}:{f+3}], {'0' if s == 0 else f'v[{r}:{r+3}]'}")
    for kc in range(4):
        a.wait(vm=[f"o{kc}"])
        a("s_barrier")
        a.probe(2 + kc)
        for s4 in range(4):
            s = 4*kc + s4
            for par in range(2):
                f = 128 + (kc % 2)*32 + (s4*2 + par)*4
                a.lg(f"ds_read_b128 v[{f}:{f+3}], v8 offset:{par*16384 + s*1024}", f"of{s}_{par}")
        if kc: mf(kc - 1)
    mf(3)

def wo_epi(a):
    a.wait(vm=["ep"])
    for e in range(4): a(f"v_add_f32 v{204+e}, v{204+e}, v{208+e}")
    for e in range(4): a(f"v_add_f32 v{212+e}, v{212+e}, v{216+e}")
    for e in range(4): bf16r(a, 204+e)
    for e in range(4): bf16r(a, 212+e)
    for e in range(4): a(f"v_add_f32 v{212+e}, 1.0, v{212+e}")
    for e in range(4): bf16r(a, 212+e)
    for d in range(4):
        a(f"v_lshlrev_b32 v{220+2*d}, 16, v{200+d}")
        a(f"v_and_b32 v{221+2*d}, 0xffff0000, v{200+d}")
    a("v_lshlrev_b32 v9, 7, v3")
    a("v_lshl_add_u32 v9, v4, 3, v9")
    a("s_lshl_b32 s55, s44, 3")
    a("s_add_u32 s55, s55, s45")
    a("s_lshl_b32 s55, s55, 13")
    a("s_lshl_b32 s56, s46, 12")
    a("s_add_u32 s55, s55, s56")
    a("s_lshl_b32 s56, s47, 5")
    a("s_add_u32 s55, s55, s56")
    a(f"s_add_u32 s55, s55, {WS_X1}")
    a("v_bfe_u32 v10, v1, 4, 1")
    a("v_lshlrev_b32 v10, 9, v10")
    a("v_lshrrev_b32 v11, 5, v1")
    a("v_lshl_add_u32 v11, v11, 4, v3")
    a("v_lshlrev_b32 v11, 4, v11")
    a("v_add_u32 v10, v10, v11")
    a("s_lshl_b32 s56, s48, 5")
    a("s_add_u32 s56, s56, s49")
    a("s_lshl_b32 s56, s56, 10")
    a(f"s_add_u32 s56, s56, {WS_Y}")
    a("s_lshl_b32 s57, s48, 13")
    a("s_bfe_u32 s58, s49, 0x30001")
    a("s_lshl_b32 s58, s58, 10")
    a("s_add_u32 s57, s57, s58")
    a("s_lshr_b32 s58, s49, 4")
    a("s_lshl_b32 s58, s58, 9")
    a("s_add_u32 s57, s57, s58")
    a("s_and_b32 s58, s49, 1")
    a("s_lshl_b32 s58, s58, 3")
    a("s_add_u32 s57, s57, s58")
    a(f"s_add_u32 s57, s57, {WS_ST}")
    a("v_and_b32 v12, 16, v1")
    a("v_cmp_eq_u32 s[58:59], 0, v12")

def wo_epi2(a):
    for e in range(8): a(f"v_fma_f32 v{220+e}, v{192+e}, v{204+e%4}, v{220+e}")
    for d in range(4): a(f"v_cvt_pk_bf16_f32 v{200+d}, v{220+2*d}, v{221+2*d}")
    for d in range(4):
        a(f"v_lshlrev_b32 v{220+2*d}, 16, v{200+d}")
        a(f"v_and_b32 v{221+2*d}, 0xffff0000, v{200+d}")
    for e in range(8): a(f"v_mul_f32 v{228+e}, v{220+e}, v{212+e%4}")
    for d in range(4): a(f"v_cvt_pk_bf16_f32 v{236+d}, v{228+2*d}, v{229+2*d}")
    a("v_permlane32_swap_b32 v236, v238")
    a("v_permlane32_swap_b32 v237, v239")
    a.vm(f"buffer_store_dwordx4 v[236:239], v10, s[28:31], s56 offen{SC()}", "yst")
    for par in range(2):
        f = 220 + 4*par; S = 240 + 2*par
        a(f"v_add_f32 v{S}, v{f}, v{f+1}")
        a(f"v_mul_f32 v{S+1}, v{f}, v{f}")
        a(f"v_add_f32 v{S}, v{S}, v{f+2}")
        a(f"v_fmac_f32 v{S+1}, v{f+1}, v{f+1}")
        a(f"v_add_f32 v{S}, v{S}, v{f+3}")
        a(f"v_fmac_f32 v{S+1}, v{f+2}, v{f+2}")
        a(f"v_fmac_f32 v{S+1}, v{f+3}, v{f+3}")
    a("v_permlane32_swap_b32 v240, v242")
    a("v_permlane32_swap_b32 v241, v243")
    a("v_add_f32 v240, v240, v242")
    a("v_add_f32 v241, v241, v243")
    a("v_mov_b32 v242, v240")
    a("v_mov_b32 v243, v241")
    a("v_permlane16_swap_b32 v240, v242")
    a("v_permlane16_swap_b32 v241, v243")
    a("v_add_f32 v240, v240, v242")
    a("v_add_f32 v241, v241, v243")
    a("s_mov_b64 exec, s[58:59]")
    a.vm(f"buffer_store_dwordx2 v[240:241], v11, s[28:31], s57 offen{SC()}", "yst")
    a("s_mov_b64 exec, -1")
    a.vm("buffer_store_dwordx2 v[200:201], v9, s[28:31], s55 offen", "x1st")
    a.vm("buffer_store_dwordx2 v[202:203], v9, s[28:31], s55 offen offset:2048", "x1st")

def k_wo(probes=False):
    a = K(); n = "kb2_wo_kernel"; a.probes_on = probes
    prologue(a, n)
    map2(a, 44, 45, *CFG['wo'])
    prologue2(a)
    wo_wdma(a, 8, 26)
    wo_setup(a)
    a.wait(vm=["wo"])
    a("s_barrier")
    a.probe(0)
    wo_preread(a)
    wo_epi(a)
    a.probe(1)
    wo_main(a)
    a.probe(6)
    wo_epi2(a)
    return finish(a, n)

GST = [0, 28832, 131072, 65536, 94368]
GUT = 123392
GUOFF = 14496
def gu_setup(a):
    map2(a, 44, 45, *CFG['gu'])
    a("s_and_b32 s46, s45, 1")
    a("s_lshl_b32 s47, s46, 5")
    a("s_mul_i32 s48, s46, 192")
    a("s_sub_u32 s48, 192, s48")
    a("v_lshlrev_b32 v2, 4, v1")
    for e in range(2):
        a("v_lshrrev_b32 v6, 2, v1")
        a("s_lshl_b32 s49, s26, 5")
        a(f"s_add_u32 s49, s49, {16*e}")
        a("v_add_u32 v6, s49, v6")
        a("v_mul_u32_u24 v7, 4682, v6")
        a("v_lshrrev_b32 v7, 16, v7")
        a("v_mul_u32_u24 v8, 14, v7")
        a("v_sub_u32 v6, v6, v8")
        a("v_mul_u32_u24 v8, 11, v6")
        a("v_lshrrev_b32 v8, 5, v8")
        a("v_mul_u32_u24 v9, 3, v8")
        a("v_sub_u32 v9, v6, v9")
        a("v_and_b32 v10, 3, v1")
        a("v_lshlrev_b32 v10, 4, v10")
        a("v_lshl_add_u32 v9, v9, 6, v10")
        a("v_add_u32 v9, s47, v9")
        a("v_subrev_u32 v11, 12, v6")
        a("v_bfe_u32 v12, v1, 1, 1")
        a("v_lshl_add_u32 v11, v11, 1, v12")
        a("v_and_b32 v12, 1, v1")
        a("v_lshlrev_b32 v12, 4, v12")
        a("v_add_u32 v12, s48, v12")
        a("v_cmp_gt_u32 vcc, 12, v6")
        a("v_cndmask_b32 v8, v11, v8, vcc")
        a("v_cndmask_b32 v9, v12, v9, vcc")
        a("v_lshl_add_u32 v8, v7, 2, v8")
        a("v_mul_u32_u24 v8, 3584, v8")
        a(f"v_add_u32 v{4+e}, v8, v9")
    a("v_subrev_u32 v5, 1024, v5")
    srd(a, 32, 12, 512 * 3584)
    srd(a, 36, 14, 512 * 3584)
    a("s_mul_i32 s49, s45, 224")
    a("s_lshl_b32 s50, s26, 11")

def gu_dma(a, c):
    st = GST[c % 5]
    for m in range(2):
        a(f"s_add_u32 m0, s50, {st + m*GUOFF}")
        if m == 0: a(f"s_add_u32 s51, s49, {c*64*3584}")
        for e in range(2):
            a.vm(f"buffer_load_dwordx4 v{4+e}, s[{32+4*m}:{35+4*m}], s51 offen offset:{e*1024} lds", f"W{c}")

def gu_setup2(a):
    a("s_lshl_b32 s53, s44, 2")
    a("s_add_u32 s53, s53, s27")
    a("s_lshl_b32 s52, s53, 15")
    a(f"s_add_u32 s52, s52, {WS_Y}")
    a("v_lshrrev_b32 v12, 5, v1")
    a("v_mul_u32_u24 v13, 896, v12")
    a("v_bfe_u32 v14, v1, 4, 1")
    a(f"v_mul_u32_u24 v14, {GUOFF}, v14")
    a("v_add_u32 v13, v13, v14")
    a("v_and_b32 v14, 3, v1")
    a("v_lshl_add_u32 v13, v14, 3, v13")
    a("v_bfe_u32 v14, v1, 2, 2")
    a("v_mul_u32_u24 v15, 192, v14")
    a("v_add_u32 v6, v13, v15")
    a("v_lshl_add_u32 v9, v14, 5, v13")
    a("v_add_u32 v9, 768, v9")
    a(f"v_add_u32 v7, {GST[3]}, v6")
    a(f"v_add_u32 v8, {GST[2]}, v6")
    a(f"v_add_u32 v10, {GST[3]}, v9")
    a(f"v_add_u32 v11, {GST[2]}, v9")

YR = 128
def gu_yload(a, s):
    if s % 4 == 0: a(f"s_add_u32 s54, s52, {s*1024}")
    a.vm(f"buffer_load_dwordx4 v[{YR+4*s}:{YR+4*s+3}], v2, s[28:31], s54 offen offset:{(s%4)*1024}{SC()}", f"y{s}")

def gu_loop(a, L, h, dma, npre, YD=8, hook=None):
    tiles = [0, 1, 2, 3] if h == 0 else [4, 5, 6]
    FR = [32, 48]; ACC = 64
    def reads(s):
        c, ks = s // 4, s % 4
        st = c % 5
        grp = {0: 0, 1: 0, 3: 1, 4: 1, 2: 2}[st]
        so = GST[st] - [0, GST[3], GST[2]][grp] + ks*3584
        out = []
        for i, t in enumerate(tiles):
            f = FR[s % 2] + 4*i
            vb = (6 if t < 6 else 9) + grp
            o = so + (32*t if t < 6 else 0)
            out.append([(f"ds_read_b64_tr_b16 v[{f+2*e}:{f+2*e+1}], v{vb} offset:{o + e*1792}", f"w{s}_{i}") for e in range(2)])
        return out
    def step(s, rd):
        for i, t in enumerate(tiles):
            f = FR[s % 2] + 4*i; r = ACC + 16*i
            a.wait(vm=[f"y{s}"], lg=[f"w{s}_{i}"])
            a(f"v_mfma_f32_32x32x16_bf16 v[{r}:{r+15}], v[{f}:{f+3}], v[{YR+4*s}:{YR+4*s+3}], {'0' if s == 0 else f'v[{r}:{r+15}]'}")
            if rd:
                for t_, g in rd[i]: a.lg(t_, g)
            if i == 0 and s + YD < 32: gu_yload(a, s + YD)
    issued = npre
    for s in range(YD): gu_yload(a, s)
    for s in range(32):
        c = s // 4
        if s % 4 == 0 and c <= 5:
            a.wait(vm=[f"W{c}"] if c < 5 else ["W5", "W6", "W7", "ut"], lg='all')
            a("s_barrier")
            a.probe(2 + c)
        rd = reads(s)
        if s == 0:
            for x in rd:
                for t_, g in x: a.lg(t_, g)
        else:
            step(s - 1, rd)
        if s % 4 == 0:
            while issued < 8 and (issued < 5 or issued - 5 < c):
                if dma: gu_dma(a, issued)
                issued += 1
                if issued <= 5 and c > 0: break
        if hook: hook(s)
    step(31, None)

def gu_ut(a, s):
    if s == 9:
        a("s_mul_i32 s55, s45, 7168")
        a(f"s_add_u32 s55, s55, {WS_UTP}")
        for p in range(4):
            for e in range(2):
                r = YR + (p*2 + e)*4
                a(f"s_add_u32 s56, s55, {p*1792 + e*1024}")
                a.vm(f"buffer_load_dwordx4 v[{r}:{r+3}], v2, s[28:31], s56 offen{SC()}", "utl")
    if s == 15:
        a.wait(vm=["utl"])
        for e in range(8):
            a(f"v_add_f32 v{YR+e}, v{YR+e}, v{YR+8+e}")
            a(f"v_add_f32 v{YR+16+e}, v{YR+16+e}, v{YR+24+e}")
            a(f"v_add_f32 v{YR+e}, v{YR+e}, v{YR+16+e}")
        a(f"v_add_u32 v16, {GUT}, v2")
        a.lg(f"ds_write_b128 v16, v[{YR}:{YR+3}]")
        a.lg(f"ds_write_b128 v16, v[{YR+4}:{YR+7}] offset:1024")

def gu_stats_load(a):
    a("s_lshl_b32 s55, s53, 13")
    a(f"s_add_u32 s55, s55, {WS_ST}")
    a("s_add_u32 s56, s55, 4096")
    for i in range(8):
        r = YR + 32 + 4*i
        a.vm(f"buffer_load_dwordx4 v[{r}:{r+3}], v2, s[28:31], s{55 + i//4} offen offset:{(i%4)*1024}{SC()}", "st")

def gu_epi(a, h):
    tiles = [0, 1, 2, 3] if h == 0 else [4, 5, 6]
    ACC = 64; S = YR + 32
    a("v_lshlrev_b32 v16, 4, v12")
    a("s_lshl_b32 s55, s46, 8")
    a(f"s_add_u32 s55, s55, {GUT}")
    a("s_mul_i32 s56, s46, 1536")
    a(f"s_sub_u32 s56, {GUT + 1536}, s56")
    a("v_add_u32 v17, s56, v16")
    a("v_add_u32 v16, s55, v16")
    UB = [YR + 64, YR + 96]
    def uread(i):
        t = tiles[i]; u = UB[i % 2]
        for vi in range(4):
            for e in range(2):
                a.lg(f"ds_read_b128 v[{u+vi*8+4*e}:{u+vi*8+4*e+3}], v{16 if t < 6 else 17} offset:{(t*256 if t < 6 else 0) + vi*64 + e*32}", f"u{i}")
    uread(0)
    a.wait(vm=["st"])
    for st in (8, 4, 2, 1):
        for p in range(st):
            a(f"v_pk_add_f32 v[{S+2*p}:{S+2*p+1}], v[{S+2*p}:{S+2*p+1}], v[{S+2*(p+st)}:{S+2*(p+st)+1}]")
    a(f"v_mov_b32 v{S+2}, v{S}")
    a(f"v_mov_b32 v{S+3}, v{S+1}")
    a(f"v_permlane32_swap_b32 v{S}, v{S+2}")
    a(f"v_permlane32_swap_b32 v{S+1}, v{S+3}")
    a(f"v_add_f32 v{S}, v{S}, v{S+2}")
    a(f"v_add_f32 v{S+1}, v{S+1}, v{S+3}")
    a(f"v_mul_f32 v{S}, {f2u(1/512):#x}, v{S}")
    a(f"v_mul_f32 v{S+1}, {f2u(1/512):#x}, v{S+1}")
    a(f"v_fma_f32 v{S+1}, -v{S}, v{S}, v{S+1}")
    a(f"v_max_f32 v{S+1}, 0, v{S+1}")
    bf16r(a, S+1)
    a(f"v_add_f32 v{S+1}, {f2u(1e-5):#x}, v{S+1}")
    bf16r(a, S+1)
    a(f"v_sqrt_f32 v{S+1}, v{S+1}")
    bf16r(a, S)
    bf16r(a, S+1)
    a(f"v_rcp_f32 v18, v{S+1}")
    a(f"v_mul_f32 v19, v{S}, v18")
    a("s_mul_i32 s55, s53, 112")
    a("s_mul_i32 s56, s45, 7")
    a("s_add_u32 s55, s55, s56")
    a("s_mul_i32 s57, s46, 6")
    a("s_sub_u32 s56, s55, s57")
    a("s_add_u32 s56, s56, 6")
    a("s_add_u32 s55, s55, s46")
    if h: a("s_add_u32 s55, s55, 4")
    a("s_lshl_b32 s55, s55, 10")
    a("s_lshl_b32 s56, s56, 10")
    a(f"s_add_u32 s55, s55, {WS_HH}")
    a(f"s_add_u32 s56, s56, {WS_HH}")
    for i, t in enumerate(tiles):
        u = UB[i % 2]; r = ACC + 16*i
        if i + 1 < len(tiles): uread(i + 1)
        a.wait(lg=[f"u{i}"])
        for hh in range(2):
            for e in range(8):
                uu = u + hh*16 + e; tt = uu + 8; rr = r + hh*8 + e
                a(f"v_fma_f32 v{tt}, -v{uu}, v19, v{tt}")
                a(f"v_fma_f32 v{rr}, v{rr}, v18, v{tt}")
        for e in range(8):
            a(f"v_max_f32 v{r+e}, 0, v{r+e}")
            a(f"v_mul_f32 v{r+e}, v{r+e}, v{r+8+e}")
        for d in range(4):
            a(f"v_cvt_pk_bf16_f32 v{r+8+d}, v{r+2*d}, v{r+2*d+1}")
        if t < 6:
            a.vm(f"buffer_store_dwordx4 v[{r+8}:{r+11}], v2, s[28:31], s55 offen offset:{i*1024}{SC()}", "hst")
        else:
            a.vm(f"buffer_store_dwordx4 v[{r+8}:{r+11}], v2, s[28:31], s56 offen{SC()}", "hst")

def gu_body(a, L, npre, pre=None):
    a("s_cmp_ge_u32 s26, 4")
    a(f"s_cbranch_scc1 {L}_h1")
    snap = a.snap()
    for path in range(3):
        h = 0 if path == 0 else 1
        dma = path < 2
        if path == 1:
            a.label(f"{L}_h1")
            a("s_cmp_eq_u32 s26, 7")
            a(f"s_cbranch_scc1 {L}_w7")
        if path == 2: a.label(f"{L}_w7")
        a.restore(snap)
        if pre: pre(path, dma)
        def hook(s):
            if path == 2: gu_ut(a, s)
            if s == 26: gu_stats_load(a)
        pr = a.probes_on; a.probes_on = pr and path == 0
        gu_loop(a, L, h, dma, npre, hook=hook)
        a.probe(8)
        gu_epi(a, h)
        a.probe(9)
        a.probes_on = pr
        if path < 2: a(f"s_branch {L}_join")
    a.label(f"{L}_join")

def k_gu(probes=False):
    a = K(); n = "kb3_gu_kernel"; a.probes_on = probes
    prologue(a, n)
    prologue2(a)
    gu_setup(a)
    gu_setup2(a)
    def pre(path, dma):
        if dma:
            gu_dma(a, 0); gu_dma(a, 1)
    gu_body(a, "L_g", 2, pre)
    return finish(a, n)

def dn_setup(a):
    map2(a, 44, 45, *CFG['wo'])
    a("s_and_b32 s46, s26, 1")
    a("s_lshr_b32 s47, s26, 1")
    a("v_lshlrev_b32 v2, 4, v1")
    a("v_lshrrev_b32 v4, 3, v1")
    a("v_and_b32 v5, 7, v1")
    a("v_bfe_u32 v6, v4, 1, 1")
    a("v_lshlrev_b32 v6, 2, v6")
    a("v_xor_b32 v5, v5, v6")
    a("v_lshlrev_b32 v3, 10, v4")
    a("v_lshl_add_u32 v3, v5, 4, v3")
    srd(a, 32, 16, 1792 * 1024)
    a(f"s_mul_i32 s48, s47, {448*1024}")
    a("s_lshl_b32 s49, s46, 13")
    a("s_add_u32 s48, s48, s49")
    a("s_lshl_b32 s49, s45, 7")
    a("s_add_u32 s48, s48, s49")
    a("s_mul_i32 s49, s47, 40960")
    a("s_lshl_b32 s50, s46, 10")
    a("s_add_u32 s49, s49, s50")
    a("v_lshrrev_b32 v6, 5, v1")
    a("v_bfe_u32 v7, v1, 2, 2")
    a("v_lshl_add_u32 v6, v6, 2, v7")
    a("v_lshlrev_b32 v4, 7, v6")
    a("v_lshrrev_b32 v7, 1, v7")
    a("v_lshl_add_u32 v4, v7, 6, v4")
    a("v_bfe_u32 v7, v1, 4, 1")
    a("v_lshl_add_u32 v4, v7, 5, v4")
    a("v_and_b32 v7, 3, v1")
    a("v_lshl_add_u32 v4, v7, 3, v4")
    a("s_mul_i32 s50, s47, 40960")
    a("v_add_u32 v4, s50, v4")
    a("v_xor_b32 v5, 64, v4")
    a("s_lshl_b32 s51, s44, 1")
    a("s_add_u32 s51, s51, s46")
    a("s_mul_i32 s51, s51, 112")
    a("s_mul_i32 s52, s47, 28")
    a("s_add_u32 s51, s51, s52")
    a("s_lshl_b32 s51, s51, 10")
    a(f"s_add_u32 s51, s51, {WS_HH}")

def dn_wdma(a, i):
    a(f"s_add_u32 m0, s49, {(i % 20)*2048}")
    a(f"s_add_u32 s52, s48, {i*16384}")
    a.vm("buffer_load_dwordx4 v3, s[32:35], s52 offen lds", f"W{i}")

def dn_wread(a, i, f):
    for nt in range(2):
        for e in range(2):
            a.lg(f"ds_read_b64_tr_b16 v[{f+4*nt+2*e}:{f+4*nt+2*e+1}], v{4+nt} offset:{(i % 20)*2048 + e*1024}", f"w{i}_{nt}")

def dn_eploads(a):
    a("s_lshl_b32 s53, s44, 3")
    a("s_add_u32 s53, s53, s45")
    a("s_lshl_b32 s53, s53, 13")
    a("s_lshl_b32 s54, s26, 10")
    a("s_add_u32 s53, s53, s54")
    a(f"s_add_u32 s53, s53, {WS_X1}")
    a.vm(f"buffer_load_dwordx4 v[8:11], v2, s[28:31], s53 offen{SC()}", "ep")
    a("v_and_b32 v6, 7, v1")
    a("v_lshlrev_b32 v6, 5, v6")
    a("s_lshl_b32 s53, s45, 8")
    for p in range(2):
        a(f"s_add_u32 s54, s53, {WS_MODP + p*12288 + 5*2048}")
        for e in range(2):
            r = 12 + p*8 + e*4
            a.vm(f"buffer_load_dwordx4 v[{r}:{r+3}], v6, s[28:31], s54 offen offset:{e*16}", "ep")

HR = 144
def dn_hload(a, i):
    if i % 4 == 0: a(f"s_add_u32 s52, s51, {i*1024}")
    a.vm(f"buffer_load_dwordx4 v[{HR+4*i}:{HR+4*i+3}], v2, s[28:31], s52 offen offset:{(i%4)*1024}{SC()}", f"h{i}")

def dn_main(a, HD=8):
    ACC = 112
    frag = lambda i: 48 + 8*i if i < 8 else 32 + 8*(i % 2)
    for i in range(HD): dn_hload(a, i)
    for i in range(28):
        if i == 18:
            a.wait(vm=[f"W{j}" for j in range(20, 28)])
            a("s_barrier")
        f = frag(i)
        for nt in range(2):
            r = ACC + 16*nt
            a.wait(vm=[f"h{i}"], lg=[f"w{i}_{nt}"])
            a(f"v_mfma_f32_32x32x16_bf16 v[{r}:{r+15}], v[{f+4*nt}:{f+4*nt+3}], v[{HR+4*i}:{HR+4*i+3}], {'0' if i == 0 else f'v[{r}:{r+15}]'}")
            if nt == 0:
                if i + HD < 28: dn_hload(a, i + HD)
                if 8 <= i + 1 < 28: dn_wread(a, i + 1, frag(i + 1))
        if i in (0, 7, 14, 21): a.probe(3 + i//7)

def dn_epi(a):
    ACC = 112
    a("v_and_b32 v28, 31, v1")
    a("s_lshl_b32 s52, s46, 5")
    a("v_add_u32 v28, s52, v28")
    a("v_and_b32 v29, 7, v1")
    a("v_lshrrev_b32 v30, 5, v1")
    a("v_xor_b32 v29, v29, v30")
    a("v_lshlrev_b32 v28, 8, v28")
    a("s_lshl_b32 s52, s47, 14")
    a("v_add_u32 v28, s52, v28")
    for j in range(4):
        a(f"v_xor_b32 v30, {2*j}, v29")
        a(f"v_lshl_add_u32 v{32+j}, v30, 4, v28")
    a("v_lshrrev_b32 v28, 3, v1")
    a("v_and_b32 v29, 7, v1")
    a("v_lshlrev_b32 v29, 1, v29")
    a("v_xor_b32 v29, v29, v28")
    a("s_lshl_b32 s52, s26, 11")
    a("v_lshlrev_b32 v30, 8, v28")
    a("v_add_u32 v30, s52, v30")
    a("v_lshl_add_u32 v36, v29, 4, v30")
    a("v_xor_b32 v37, 16, v36")
    a("v_lshlrev_b32 v38, 11, v28")
    a("v_and_b32 v29, 7, v1")
    a("v_lshl_add_u32 v38, v29, 4, v38")
    a("s_lshl_b32 s52, s44, 6")
    a("s_lshr_b32 s53, s26, 2")
    a("s_lshl_b32 s53, s53, 5")
    a("s_add_u32 s52, s52, s53")
    a("s_bfe_u32 s53, s26, 0x10001")
    a("s_add_u32 s52, s52, s53")
    a("s_lshl_b32 s53, s46, 4")
    a("s_add_u32 s52, s52, s53")
    a("s_lshl_b32 s52, s52, 10")
    a("s_lshl_b32 s53, s45, 7")
    a("s_add_u32 s52, s52, s53")
    srd(a, 36, 20, 2048 * 1024)
    a.wait(vm=["ep"], lg='all')
    for e in range(8): a(f"v_add_f32 v{12+e}, v{12+e}, v{20+e}")
    for e in range(8): bf16r(a, 12+e)
    for d in range(4):
        a(f"v_lshlrev_b32 v{20+2*d}, 16, v{8+d}")
        a(f"v_and_b32 v{21+2*d}, 0xffff0000, v{8+d}")
    a("s_barrier")
    for nt in range(2):
        for j in range(4):
            r = ACC + 16*nt + 4*j
            a.lg(f"ds_write_b128 v{32+j}, v[{r}:{r+3}] offset:{nt*128}")
    a.wait(lg='all')
    a("s_barrier")
    a.probe(8)
    for k in range(4):
        for e in range(2):
            a.lg(f"ds_read_b128 v[{48+8*k+4*e}:{51+8*k+4*e}], v{36+e} offset:{k*16384}", f"p{k}")
    a.wait(lg=["p0", "p1"])
    for e in range(8): a(f"v_add_f32 v{48+e}, v{48+e}, v{56+e}")
    a.wait(lg=["p2", "p3"])
    for e in range(8): a(f"v_add_f32 v{64+e}, v{64+e}, v{72+e}")
    for e in range(8): a(f"v_add_f32 v{48+e}, v{48+e}, v{64+e}")
    for e in range(8): a(f"v_fma_f32 v{48+e}, v{48+e}, v{12+e}, v{20+e}")
    for d in range(4): a(f"v_cvt_pk_bf16_f32 v{8+d}, v{48+2*d}, v{49+2*d}")
    a.vm("buffer_store_dwordx4 v[8:11], v38, s[36:39], s52 offen")

def k_dn(probes=False):
    a = K(); n = "kb4_dn_kernel"; a.probes_on = probes
    prologue(a, n)
    prologue2(a)
    dn_setup(a)
    for i in range(20): dn_wdma(a, i)
    dn_eploads(a)
    a.wait(vm=[f"W{i}" for i in range(20)])
    a("s_barrier")
    a.probe(0)
    for i in range(8): dn_wread(a, i, 48 + 8*i)
    a.wait(lg='all')
    a("s_barrier")
    a.probe(1)
    for i in range(20, 28): dn_wdma(a, i)
    a.probe(2)
    dn_main(a)
    a.probe(7)
    dn_epi(a)
    return finish(a, n)
```

```python
from asmlib import *
import struct, copy
NAME = "adaLN_cond__sliding_local_dilated__glu_gated_reglu__prompt"
LOG2E = 1.4426950408889634
def f2u(f): return struct.unpack('<I', struct.pack('<f', f))[0]
NEG = 0xf149f2ca

WS_MODP = 0
WS_FLAGS = 32768
WS_UTP = 65536
WS_ST = 262144
WS_XN = 1 << 20
WS_O = 3 << 20
WS_Y = 5 << 20
WS_X1 = 7 << 20
WS_HH = 9 << 20
WS_SIZE = 32 << 20

class K(Asm):
    def __init__(self):
        super().__init__()
        self.vmq = []; self.lgq = []
        self.nprobe = 0
        self.probes_on = False
    def vm(self, text, tag=None):
        self(text); self.vmq.append(tag)
    def lg(self, text, tag=None):
        self(text); self.lgq.append(tag)
    def _cnt(self, q, tags):
        if tags == 'all':
            return 0 if q else None
        idx = [i for i, t in enumerate(q) if t in tags]
        if not idx: return None
        return len(q) - 1 - max(idx)
    def wait(self, vm=(), lg=()):
        parts = []
        n = self._cnt(self.vmq, vm)
        if n is not None:
            n = min(n, 63)
            parts.append(f"vmcnt({n})")
            self.vmq = self.vmq[len(self.vmq) - n:] if n else []
        n = self._cnt(self.lgq, lg)
        if n is not None:
            n = min(n, 15)
            parts.append(f"lgkmcnt({n})")
            self.lgq = self.lgq[len(self.lgq) - n:] if n else []
        if parts: self("s_waitcnt " + " ".join(parts))
    def snap(self): return (list(self.vmq), list(self.lgq))
    def restore(self, s): self.vmq, self.lgq = list(s[0]), list(s[1])
    def probe(self, idx):
        if self.probes_on:
            self(f"s_memtime s[{62+2*idx}:{63+2*idx}]")

def bf16r(a, v):
    a(f"v_cvt_pk_bf16_f32 v{v}, v{v}, v{v}")
    a(f"v_lshlrev_b32 v{v}, 16, v{v}")

def srd(a, d, lo, size, off=None):
    if off is None:
        a(f"s_mov_b32 s{d}, s{lo}")
        a(f"s_mov_b32 s{d+1}, s{lo+1}")
    else:
        a(f"s_add_u32 s{d}, s{lo}, {off}")
        a(f"s_addc_u32 s{d+1}, s{lo+1}, 0")
    a(f"s_mov_b32 s{d+2}, {size}")
    a(f"s_mov_b32 s{d+3}, 0x20000")

def build(ks, path):
    hdr = open("cdna_kernels/" + NAME + ".s.ref").read().split("\n")
    hdr = [l for l in hdr if l.startswith(";") and "@launch" not in l and "Override" not in l and "grid=ceil" not in l]
    out = hdr + [k[3] for k in ks]
    out.append('.amdgcn_target "amdgcn-amd-amdhsa--gfx950"\n.text')
    seen = set()
    for k in ks:
        if k[0] in seen: continue
        seen.add(k[0]); out.append(k[1])
    out.append('.section .rodata,"a"')
    seen = set()
    for k in ks:
        if k[0] in seen: continue
        seen.add(k[0]); out.append(k[2])
    open(path, "w").write("\n".join(out) + "\n")
```

```python
import re
ST_OFF = 64 << 20
def stamp(k, idx):
    n, text, desc, launch = k
    head = f"{n}:\n    s_memrealtime s[90:91]\n    s_memtime s[88:89]\n"
    text = text.replace(f"{n}:\n", head, 1)
    tail = f"""    s_mov_b64 exec, -1
    s_waitcnt vmcnt(0) lgkmcnt(0)
    s_memrealtime s[92:93]
    s_memtime s[86:87]
    s_load_dwordx2 s[94:95], s[0:1], 88
    s_lshl_b32 s96, s2, 4
    s_add_u32 s96, s96, {ST_OFF + idx*8192}
    v_cmp_eq_u32 vcc, 0, v0
    s_nop 4
    s_and_saveexec_b64 s[98:99], vcc
    s_cbranch_execz L_stampend{idx}
    s_waitcnt lgkmcnt(0)
    v_mov_b32 v1, s96
    v_mov_b32 v2, s90
    s_sub_u32 s86, s86, s88
    v_mov_b32 v3, s86
    v_mov_b32 v4, s92
    v_mov_b32 v5, s93
    global_store_dwordx4 v1, v[2:5], s[94:95]
L_stampend{idx}:
    s_endpgm"""
    assert text.count("s_endpgm") == 1
    text = text.replace("    s_endpgm", tail)
    desc = re.sub(r"next_free_sgpr \d+", "next_free_sgpr 102", desc)
    return n, text, desc, launch
BLOCKER = """
.globl kb_kernel
.p2align 8
.type kb_kernel,@function
kb_kernel:
    s_memrealtime s[10:11]
    s_waitcnt lgkmcnt(0)
    s_add_u32 s16, s10, 10000
L_spin:
    s_memrealtime s[12:13]
    s_waitcnt lgkmcnt(0)
    s_sub_u32 s17, s12, s16
    s_cmp_lt_i32 s17, 0
    s_cbranch_scc1 L_spin
    s_endpgm
"""
def blocker():
    from asmlib import kdesc
    return "kb_kernel", BLOCKER, kdesc("kb_kernel", 8, 24), "; @launch kernel=kb_kernel grid=(1,1,1) block=(64,1,1) lds=0"

PR_OFF = 65 << 20
def stamp2(k, idx, marks):
    n, text, desc, launch = k
    lines = text.split("\n")
    out = []; np_ = 0
    cnt = {}
    for l in lines:
        for sub, occ, before in marks:
            if sub in l and before:
                c = cnt.get((sub, before), 0); cnt[(sub, before)] = c + 1
                if (occ is None or c in occ) and np_ < 12:
                    out.append(f"    s_memtime s[{62+2*np_}:{63+2*np_}]"); np_ += 1
        out.append(l)
        for sub, occ, before in marks:
            if sub in l and not before:
                c = cnt.get((sub, before), 0); cnt[(sub, before)] = c + 1
                if (occ is None or c in occ) and np_ < 12:
                    out.append(f"    s_memtime s[{62+2*np_}:{63+2*np_}]"); np_ += 1
    text = "\n".join(out)
    n, text, desc, launch = stamp((n, text, desc, launch), idx)
    extra = [f"    s_lshl_b32 s96, s2, 6", f"    s_add_u32 s96, s96, {PR_OFF + idx*32768}", "    v_mov_b32 v1, s96"]
    for g in range(3):
        for j in range(4):
            p = g*4 + j
            if p < np_:
                extra.append(f"    s_sub_u32 s{62+2*p}, s{62+2*p}, s88")
                extra.append(f"    v_mov_b32 v{2+j}, s{62+2*p}")
            else:
                extra.append(f"    v_mov_b32 v{2+j}, 0")
        extra.append(f"    global_store_dwordx4 v1, v[2:5], s[94:95] offset:{g*16}")
        extra.append("    s_nop 1")
    text = text.replace(f"L_stampend{idx}:", "    s_nop 1\n" + "\n".join(extra) + f"\nL_stampend{idx}:")
    text = text.replace(f"s_cbranch_execz     s_nop 1", "XXX")
    return n, text, desc, launch
```

```python
import sys
from g2a import *
from g2b import *
from stamp import *
def lnmap(a):
    a("s_and_b32 s23, s21, 3")
    a("s_lshl_b32 s23, s23, 3")
    a("s_lshr_b32 s24, s21, 2")
    a("s_lshl_b32 s24, s24, 2")
    a("s_add_u32 s23, s23, s24")
    a("s_lshr_b32 s24, s22, 3")
    a("s_add_u32 s23, s23, s24")
def kernels(pr):
    return [k_prep_full(lnmap), k_qkv(pr), k_wo(pr), k_gu(pr), k_dn(pr)]
def stamp3(k, idx):
    n, text, desc, launch = k
    end = "L_ka_end" if n.startswith("ka") else f"L_{n}_end"
    parts = text.split("    s_endpgm")
    text = f"    s_branch {end}".join(parts[:-1]) + "    s_endpgm" + parts[-1]
    text = text.replace(f"{n}:\n", f"{n}:\n" + "".join(f"    s_mov_b32 s{62+2*p}, 0\n" for p in range(12)), 1)
    n, text, desc, launch = stamp((n, text, desc, launch), idx)
    extra = [f"    s_lshl_b32 s96, s2, 6", f"    s_add_u32 s96, s96, {PR_OFF + idx*32768}", "    v_mov_b32 v1, s96"]
    for g in range(3):
        for j in range(4):
            p = g*4 + j
            extra.append(f"    s_sub_u32 s97, s{62+2*p}, s88")
            extra.append(f"    s_cmp_eq_u32 s{62+2*p}, 0")
            extra.append(f"    s_cselect_b32 s97, 0, s97")
            extra.append(f"    v_mov_b32 v{2+j}, s97")
        extra.append(f"    global_store_dwordx4 v1, v[2:5], s[94:95] offset:{g*16}")
        extra.append("    s_nop 1")
    text = text.replace(f"L_stampend{idx}:", "    s_nop 1\n" + "\n".join(extra) + f"\nL_stampend{idx}:")
    return n, text, desc, launch
if __name__ == "__main__":
    build(kernels(False), "v2.s")
    build([blocker()] + [stamp3(k, i) for i, k in enumerate(kernels(True))], "v2_st.s")
```
